```python
import torch

def _softmax(x, axis=-1):
    return torch.softmax(x, dim=axis)

def _gelu(x):
    return torch.nn.functional.gelu(x, approximate='tanh')

def _silu(x):
    return torch.nn.functional.silu(x)

def _sigmoid(x):
    return torch.sigmoid(x)

def _layernorm(x, axis=-1, eps=1e-05):
    m = x.mean(dim=axis, keepdim=True)
    v = x.var(dim=axis, keepdim=True, unbiased=False)
    return (x - m) / torch.sqrt(v + eps)

def _scatter_add(tgt, idx, src, axis=0):
    return tgt.clone().index_add_(axis, idx, src)

def _segment_sum(src, seg, n):
    out = torch.zeros((n,) + src.shape[1:], dtype=src.dtype)
    return out.index_add_(0, seg, src)

def _pad(x, pw):
    flat = tuple((v for pair in reversed(pw) for v in pair))
    return torch.nn.functional.pad(x, flat)
kernel_name = 'adaLN_cond__grouped_kv_mqa__dense_activation_relu__prompt'

def setup_inputs():

    _w = lambda a: (lambda t: t.to(torch.bfloat16) if t.is_floating_point() else t)(torch.as_tensor(a))

    def _A_setup():
        B, S, D, H = (1, 2048, 576, 32)
        Dh = D // H
        return {'x': _w((lambda *s: torch.randn(*s, dtype=torch.bfloat16) * 0.05)(B, S, D)), 'wq': _w((lambda *s: torch.randn(*s, dtype=torch.bfloat16) * 0.05)(D, H * Dh)), 'wk': _w((lambda *s: torch.randn(*s, dtype=torch.bfloat16) * 0.05)(D, Dh)), 'wv': _w((lambda *s: torch.randn(*s, dtype=torch.bfloat16) * 0.05)(D, Dh)), 'wo': _w((lambda *s: torch.randn(*s, dtype=torch.bfloat16) * 0.05)(H * Dh, D))}
    _A_in = _A_setup()

    def _B_setup():
        B, S, D, Dff = (1, 2048, 576, 4608)
        return {'x': _w((lambda *s: torch.randn(*s, dtype=torch.bfloat16) * 0.05)(B, S, D)), 'w1': _w((lambda *s: torch.randn(*s, dtype=torch.bfloat16) * 0.05)(D, Dff)), 'w2': _w((lambda *s: torch.randn(*s, dtype=torch.bfloat16) * 0.05)(Dff, D))}
    _B_in = _B_setup()
    return {'A_x': _A_in['x'], 'A_wq': _A_in['wq'], 'A_wk': _A_in['wk'], 'A_wv': _A_in['wv'], 'A_wo': _A_in['wo'], 'B_x': _B_in['x'], 'B_w1': _B_in['w1'], 'B_w2': _B_in['w2'], 'c': _w((lambda *s: torch.randn(*s, dtype=torch.bfloat16) * 0.1)(1, 576) * 8.0), 'w_mod': _w((lambda *s: torch.randn(*s, dtype=torch.bfloat16) * 0.1)(576, 6 * 576) * 576 ** (-0.5) * 8.0)}

def reference(A_x, A_wq, A_wk, A_wv, A_wo, B_x, B_w1, B_w2, c, w_mod):

    def _A_ref(x, wq, wk, wv, wo):
        B, S, D = x.shape
        H = 32
        Dh = D // H
        q = (lambda x, *d: x.permute(*d))((x @ wq).reshape(B, S, H, Dh), 0, 2, 1, 3)
        k = x @ wk
        v = x @ wv
        scores = torch.einsum('bhqd,bkd->bhqk', q, k) * Dh ** (-0.5)
        p = _softmax(scores, axis=-1)
        o = torch.einsum('bhqk,bkd->bhqd', p, v)
        return (lambda x, *d: x.permute(*d))(o, 0, 2, 1, 3).reshape(B, S, H * Dh) @ wo

    def _B_ref(x, w1, w2):
        h = torch.einsum('bsd,df->bsf', x, w1)
        zero = torch.zeros_like(h)
        h = torch.maximum(h, zero)
        return torch.einsum('bsf,fd->bsd', h, w2)
    x = A_x
    mod = (_silu(c) @ w_mod).reshape(c.shape[0], 6, 1, -1)
    sa, ca, ga, sb, cb, gb = (mod[:, 0].clone(), mod[:, 1].clone(), mod[:, 2].clone(), mod[:, 3].clone(), mod[:, 4].clone(), mod[:, 5].clone())
    h = _layernorm(x, axis=-1) * (1 + ca) + sa
    x = x + ga * _A_ref(h, A_wq, A_wk, A_wv, A_wo)
    h = _layernorm(x, axis=-1) * (1 + cb) + sb
    x = x + gb * _B_ref(h, B_w1, B_w2)
    return x
```

```python
import struct

def f32bits(x):
    return struct.unpack("<I", struct.pack("<f", x))[0]

class Kernel:
    def __init__(self, name, grid, block, lds=0, vgpr=128, sgpr=96):
        self.name = name; self.grid = grid; self.block = block; self.lds = lds
        self.vgpr = vgpr; self.sgpr = sgpr
        self.lines = []
        self._lab = 0
    def e(self, s):
        for l in s.strip("\n").split("\n"):
            l = l.strip()
            if not l: continue
            if l.endswith(":"):
                self.lines.append(l)
            else:
                self.lines.append("    " + l)
    def label(self, base):
        self._lab += 1
        return f"L_{self.name}_{base}_{self._lab}"
    def srd(self, d, base, off, size):
        if off:
            self.e(f"s_add_u32 s{d}, s{base}, {off}")
            self.e(f"s_addc_u32 s{d+1}, s{base+1}, 0")
        else:
            self.e(f"s_mov_b32 s{d}, s{base}")
            self.e(f"s_mov_b32 s{d+1}, s{base+1}")
        self.e(f"s_mov_b32 s{d+2}, {size}")
        self.e(f"s_mov_b32 s{d+3}, 0x20000")
    def stamp(self, i):
        if not getattr(self, "stamps", False): return
        self.e(f"s_memtime s[{70+2*i}:{71+2*i}]")
        if i == 0: self.e("s_memrealtime s[96:97]")
        self.e("s_waitcnt lgkmcnt(0)")
    def stamp_dump(self, n, wave_sgpr, wg):
        if not getattr(self, "stamps", False): return
        lab = self.label("nostamp")
        self.e(f"""
        s_mov_b64 exec, -1
        s_cmp_lg_u32 s2, {wg}
        s_cbranch_scc1 {lab}
        s_cmp_ge_u32 s{wave_sgpr}, 8
        s_cbranch_scc1 {lab}
        s_load_dwordx2 s[88:89], s[0:1], 88
        s_memrealtime s[98:99]
        s_waitcnt lgkmcnt(0)
        s_mov_b32 s92, s88
        s_mov_b32 s93, s89
        s_mov_b32 s94, 256
        s_mov_b32 s95, 0x20000
        s_lshl_b32 s90, s{wave_sgpr}, 5
        v_mov_b32 v1, 0
        """)
        for i in range(n):
            self.e(f"s_sub_u32 s91, s{70+2*i}, s70")
            self.e(f"v_mov_b32 v2, s91")
            self.e(f"buffer_store_dword v2, v1, s[92:95], s90 offen offset:{4*i}")
        self.e(f"s_sub_u32 s91, s98, s96")
        self.e(f"v_mov_b32 v2, s91")
        self.e(f"buffer_store_dword v2, v1, s[92:95], s90 offen offset:28")
        self.e(f"{lab}:")
    def text(self):
        h = f".globl {self.name}\n.p2align 8\n.type {self.name},@function\n{self.name}:\n"
        return h + "\n".join(self.lines) + "\n"
    def desc(self):
        acc = (self.vgpr + 3) // 4 * 4
        return f""".p2align 6
.amdhsa_kernel {self.name}
  .amdhsa_next_free_vgpr {self.vgpr}
  .amdhsa_next_free_sgpr {self.sgpr}
  .amdhsa_accum_offset {acc}
  .amdhsa_group_segment_fixed_size 0
  .amdhsa_kernarg_size 104
  .amdhsa_user_sgpr_count 2
  .amdhsa_user_sgpr_kernarg_segment_ptr 1
  .amdhsa_system_sgpr_workgroup_id_x 1
.end_amdhsa_kernel
"""
    def launch_line(self):
        return f"; @launch kernel={self.name} grid=({self.grid},1,1) block=({self.block},1,1) lds={self.lds}\n"

HEADER = """; Kernarg layout for this problem (104 bytes, ptrs only, base s[0:1]):
"""

def emit_file(kernels, path):
    out = HEADER
    for k in kernels: out += k.launch_line()
    out += '.amdgcn_target "amdgcn-amd-amdhsa--gfx950"\n.text\n'
    for k in kernels: out += k.text()
    out += '.section .rodata,"a"\n'
    for k in kernels: out += k.desc()
    open(path, "w").write(out)
```

```python
from asmlib import *
from layout import *

def gen_k0():
    k = Kernel("k0_kernel", grid=378, block=256, lds=2048, vgpr=128, sgpr=48)
    e = k.e
    e("""
    s_cmp_ge_u32 s2, 378
    s_cbranch_scc1 L_k0_end
    s_load_dwordx2 s[4:5], s[0:1], 96
    s_cmp_ge_u32 s2, 288
    s_cbranch_scc1 L_k0_relayout
    s_cmp_ge_u32 s2, 224
    s_cbranch_scc1 L_k0_ln
    """)
    e("""
    s_load_dwordx4 s[8:11], s[0:1], 64
    s_lshr_b32 s12, s2, 3
    s_and_b32 s13, s2, 7
    s_lshr_b32 s14, s12, 2
    s_lshl_b32 s14, s14, 5
    s_lshl_b32 s13, s13, 2
    s_add_u32 s14, s14, s13
    s_and_b32 s12, s12, 3
    s_add_u32 s14, s14, s12
    s_cmp_ge_u32 s14, 216
    s_cbranch_scc1 L_k0_end
    s_lshl_b32 s15, s14, 5
    v_lshrrev_b32 v1, 1, v0
    v_and_b32 v2, 1, v0
    v_lshlrev_b32 v2, 4, v2
    v_mul_u32_u24 v3, 6912, v1
    v_add_u32 v3, v3, v2
    v_lshlrev_b32 v8, 1, v1
    """)
    for i in range(1, 5):
        e(f"v_add_u32 v{3+i}, {884736*i}, v3")
    e("s_waitcnt lgkmcnt(0)")
    k.srd(16, 8, 0, 1152)
    k.srd(20, 10, 0, 576*6912)
    k.srd(24, 4, 0, 0x8000)
    for i in range(5):
        e(f"buffer_load_ushort v{10+i}, v8, s[16:19], 0 offen offset:{256*i}")
    for i in range(5):
        e(f"buffer_load_dwordx4 v[{16+4*i}:{19+4*i}], v{3+i}, s[20:23], s15 offen")
    for i in range(8):
        e(f"v_mov_b32 v{40+i}, 0")
    e("s_waitcnt vmcnt(5)")
    e(f"s_mov_b32 s30, {hex(f32bits(-1.4426950408889634))}")
    for i in range(5):
        e(f"v_lshlrev_b32 v{10+i}, 16, v{10+i}")
    for i in range(5):
        e(f"v_mul_f32 v{50+i}, s30, v{10+i}")
    for i in range(5):
        e(f"v_exp_f32 v{50+i}, v{50+i}")
    e("s_nop 0")
    for i in range(5):
        e(f"v_add_f32 v{50+i}, 1.0, v{50+i}")
    for i in range(5):
        e(f"v_rcp_f32 v{50+i}, v{50+i}")
    e("s_nop 0")
    for i in range(5):
        e(f"v_mul_f32 v{50+i}, v{50+i}, v{10+i}")
    for i in range(5):
        e(f"v_cvt_pk_bf16_f32 v{50+i}, v{50+i}, v{50+i}")
    for i in range(5):
        e(f"v_lshlrev_b32 v{50+i}, 16, v{50+i}")
    for i in range(5):
        e(f"s_waitcnt vmcnt({4-i})")
        for d in range(4):
            w = 16 + 4*i + d
            e(f"v_lshlrev_b32 v56, 16, v{w}")
            e(f"v_and_b32 v57, 0xffff0000, v{w}")
            e(f"v_fmac_f32 v{40+2*d}, v{50+i}, v56")
            e(f"v_fmac_f32 v{41+2*d}, v{50+i}, v57")
    e("s_nop 1")
    for rot in (2, 4, 8):
        for i in range(8):
            e(f"v_add_f32_dpp v{40+i}, v{40+i}, v{40+i} row_ror:{rot} row_mask:0xf bank_mask:0xf")
    e("""
    v_lshrrev_b32 v4, 4, v0
    v_lshlrev_b32 v4, 6, v4
    v_lshl_add_u32 v4, v2, 1, v4
    v_and_b32 v5, 15, v0
    v_cmp_gt_u32 vcc, 2, v5
    s_and_saveexec_b64 s[32:33], vcc
    ds_write_b128 v4, v[40:43]
    ds_write_b128 v4, v[44:47] offset:16
    s_mov_b64 exec, s[32:33]
    s_waitcnt lgkmcnt(0)
    s_barrier
    v_cmp_gt_u32 vcc, 16, v0
    s_and_saveexec_b64 s[32:33], vcc
    s_cbranch_execz L_k0_end
    v_lshlrev_b32 v4, 2, v0
    """)
    for i in range(16):
        e(f"ds_read_b32 v{16+i}, v4 offset:{64*i}")
    e("s_waitcnt lgkmcnt(0)")
    for st in (8, 4, 2, 1):
        for i in range(st):
            e(f"v_add_f32 v{16+i}, v{16+i}, v{16+i+st}")
    e(f"""
    s_mul_i32 s12, s14, 1821
    s_lshr_b32 s12, s12, 16
    s_mul_i32 s13, s12, 36
    s_sub_u32 s13, s14, s13
    s_lshl_b32 s13, s13, 4
    v_cvt_pk_bf16_f32 v16, v16, v16
    v_lshlrev_b32 v16, 16, v16
    s_cmp_eq_u32 s12, 1
    s_cbranch_scc1 L_k0_plus1
    s_cmp_eq_u32 s12, 4
    s_cbranch_scc0 L_k0_noplus1
    L_k0_plus1:
    v_add_f32 v16, 1.0, v16
    v_cvt_pk_bf16_f32 v16, v16, v16
    v_lshlrev_b32 v16, 16, v16
    L_k0_noplus1:
    s_lshl_b32 s15, s14, 6
    buffer_store_dword v16, v4, s[24:27], s15 offen
    s_cmp_eq_u32 s12, 4
    s_cselect_b32 s31, 0, 64
    s_cbranch_scc1 L_k0_cbt
    s_cmp_eq_u32 s12, 3
    s_cbranch_scc0 L_k0_end
    L_k0_cbt:
    """)
    e(f"""
    s_lshr_b32 s34, s13, 5
    s_lshl_b32 s34, s34, 7
    s_add_u32 s34, s34, s31
    s_lshr_b32 s35, s13, 4
    s_and_b32 s35, s35, 1
    s_lshl_b32 s35, s35, 3
    s_add_u32 s34, s34, s35
    s_add_u32 s34, s34, {WS_CBT}
    v_lshrrev_b32 v5, 2, v0
    v_lshlrev_b32 v5, 4, v5
    v_and_b32 v6, 3, v0
    v_lshl_add_u32 v5, v6, 1, v5
    buffer_store_short_d16_hi v16, v5, s[24:27], s34 offen
    s_endpgm
    """)
    e("""
    L_k0_ln:
    s_load_dwordx2 s[8:9], s[0:1], 0
    s_sub_u32 s12, s2, 224
    s_mul_i32 s12, s12, 36864
    v_lshrrev_b32 v1, 3, v0
    v_mul_u32_u24 v1, 1152, v1
    v_and_b32 v2, 7, v0
    v_lshl_add_u32 v1, v2, 4, v1
    v_add_u32 v1, s12, v1
    s_waitcnt lgkmcnt(0)
    """)
    k.srd(16, 8, 0, ACT_BYTES)
    k.srd(20, 4, WS_N1, ACT_BYTES)
    for i in range(9):
        e(f"buffer_load_dwordx4 v[{4+4*i}:{7+4*i}], v1, s[16:19], 0 offen offset:{128*i}")
    e("v_mov_b32 v2, 0\nv_mov_b32 v3, 0")
    for i in range(9):
        e(f"s_waitcnt vmcnt({8-i})")
        for d in range(4):
            w = 4 + 4*i + d; o = 40 + 8*i + 2*d
            e(f"v_lshlrev_b32 v{o}, 16, v{w}")
            e(f"v_and_b32 v{o+1}, 0xffff0000, v{w}")
            e(f"v_add_f32 v2, v2, v{o}")
            e(f"v_add_f32 v3, v3, v{o+1}")
    def red8(r):
        e(f"""
        s_nop 1
        v_add_f32_dpp v{r}, v{r}, v{r} quad_perm:[1,0,3,2] row_mask:0xf bank_mask:0xf
        s_nop 1
        v_add_f32_dpp v{r}, v{r}, v{r} quad_perm:[2,3,0,1] row_mask:0xf bank_mask:0xf
        s_nop 1
        v_add_f32_dpp v{r}, v{r}, v{r} row_half_mirror row_mask:0xf bank_mask:0xf
        """)
    e("v_add_f32 v2, v2, v3")
    red8(2)
    e(f"v_mul_f32 v2, {hex(f32bits(1.0/576))}, v2")
    e("v_mov_b32 v3, 0\nv_mov_b32 v4, 0")
    for i in range(72):
        e(f"v_sub_f32 v{40+i}, v{40+i}, v2")
        e(f"v_fmac_f32 v{3+(i&1)}, v{40+i}, v{40+i}")
    e("v_add_f32 v3, v3, v4")
    red8(3)
    e(f"v_mov_b32 v4, {hex(f32bits(1e-5))}")
    e(f"v_fmac_f32 v4, {hex(f32bits(1.0/576))}, v3")
    e("v_rsq_f32 v4, v4\ns_nop 0")
    for i in range(9):
        for d in range(4):
            o = 40 + 8*i + 2*d
            e(f"v_mul_f32 v{o}, v{o}, v4")
            e(f"v_mul_f32 v{o+1}, v{o+1}, v4")
            e(f"v_cvt_pk_bf16_f32 v{8+4*(i%2)+d}, v{o}, v{o+1}")
        b = 8 + 4*(i%2)
        e(f"buffer_store_dwordx4 v[{b}:{b+3}], v1, s[20:23], 0 offen offset:{128*i}")
    e("s_endpgm")
    e("""
    L_k0_relayout:
    s_load_dwordx4 s[8:11], s[0:1], 8
    s_load_dwordx2 s[12:13], s[0:1], 24
    v_lshrrev_b32 v1, 6, v0
    v_and_b32 v2, 63, v0
    v_readfirstlane_b32 s14, v1
    s_sub_u32 s15, s2, 288
    s_lshl_b32 s15, s15, 2
    s_add_u32 s14, s14, s15
    s_lshl_b32 s14, s14, 1
    s_mul_i32 s15, s14, 1639
    s_lshr_b32 s15, s15, 16
    s_mul_i32 s16, s15, 40
    s_sub_u32 s16, s14, s16
    v_and_b32 v3, 15, v2
    v_lshrrev_b32 v4, 4, v2
    v_lshlrev_b32 v4, 3, v4
    s_lshl_b32 s17, s15, 5
    v_add_u32 v4, s17, v4
    v_lshlrev_b32 v5, 4, v2
    s_mul_i32 s18, s16, 18
    s_add_u32 s18, s18, s15
    s_lshl_b32 s18, s18, 10
    s_waitcnt lgkmcnt(0)
    """)
    k.srd(24, 4, WS_WQKV, 40*18*1024)
    e("""
    s_cmp_ge_u32 s16, 36
    s_cbranch_scc1 L_k0_kv
    """)
    k.srd(20, 8, 0, 576*1152)
    e("""
    v_mul_u32_u24 v6, 1152, v4
    v_lshl_add_u32 v6, v3, 1, v6
    s_lshl_b32 s19, s16, 5
    v_add_u32 v6, s19, v6
    v_add_u32 v7, 4608, v6
    """)
    for fr in range(2):
        for j in range(8):
            e(f"buffer_load_ushort v{16+8*fr+j}, v{6+j//4}, s[20:23], 0 offen offset:{(j%4)*1152 + 32*fr}")
    e("s_branch L_k0_st")
    e("L_k0_kv:")
    e("""
    s_cmp_ge_u32 s16, 38
    s_cselect_b32 s20, s12, s10
    s_cselect_b32 s21, s13, s11
    s_mov_b32 s22, 20736
    s_mov_b32 s23, 0x20000
    v_mul_u32_u24 v6, 36, v4
    v_add_u32 v7, 16, v3
    v_min_u32 v7, 17, v7
    v_lshl_add_u32 v7, v7, 1, v6
    v_lshl_add_u32 v6, v3, 1, v6
    """)
    for fr in range(2):
        for j in range(8):
            e(f"buffer_load_ushort v{16+8*fr+j}, v{6+fr}, s[20:23], 0 offen offset:{j*36}")
    e("L_k0_st:")
    e("s_waitcnt vmcnt(8)")
    for i in range(4): e(f"v_lshl_or_b32 v{8+i}, v{17+2*i}, 16, v{16+2*i}")
    e("""
    buffer_store_dwordx4 v[8:11], v5, s[24:27], s18 offen
    s_add_u32 s18, s18, 18432
    s_waitcnt vmcnt(1)
    """)
    for i in range(4): e(f"v_lshl_or_b32 v{12+i}, v{25+2*i}, 16, v{24+2*i}")
    e("""
    buffer_store_dwordx4 v[12:15], v5, s[24:27], s18 offen
    L_k0_end:
    s_endpgm
    """)
    return k
```

```python
from asmlib import *
from layout import *
import math

def gen_k1(stamps=False):
    k = Kernel("k1_kernel", grid=256, block=640, lds=36*1024, vgpr=168, sgpr=100)
    k.stamps = stamps
    e = k.e
    k.stamp(0)
    A = 64
    e("""
    s_cmp_ge_u32 s2, 256
    s_cbranch_scc1 L_k1_end
    s_load_dwordx2 s[4:5], s[0:1], 96
    v_lshrrev_b32 v1, 6, v0
    v_and_b32 v2, 63, v0
    v_readfirstlane_b32 s6, v1
    s_and_b32 s7, s2, 3
    s_lshr_b32 s8, s2, 2
    s_mul_i32 s9, s7, 10
    s_add_u32 s9, s9, s6
    v_and_b32 v3, 15, v2
    v_lshrrev_b32 v4, 4, v2
    v_lshlrev_b32 v5, 4, v2
    s_waitcnt lgkmcnt(0)
    """)
    k.srd(12, 4, WS_N1, ACT_BYTES)
    k.srd(16, 4, WS_MOD, 13824)
    k.srd(20, 4, WS_WQKV, 40*18*1024)
    k.stamp(1)
    e("""
    s_cmp_ge_u32 s6, 9
    s_cbranch_scc1 L_k1_noprep
    """)
    e("""
    v_mul_u32_u24 v6, 1152, v3
    v_lshl_add_u32 v6, v4, 4, v6
    s_mul_i32 s10, s8, 36864
    s_lshl_b32 s11, s6, 7
    s_add_u32 s10, s10, s11
    s_add_u32 s24, s10, 18432
    v_lshlrev_b32 v7, 5, v4
    s_lshl_b32 s11, s6, 8
    """)
    for ds in range(2):
        for nt in range(2):
            r = 8 + 8*ds + 4*nt
            e(f"buffer_load_dwordx4 v[{r}:{r+3}], v6, s[12:15], s{10 if nt==0 else 24} offen offset:{64*ds}")
    for ds in range(2):
        r = 24 + 16*ds
        e(f"buffer_load_dwordx4 v[{r}:{r+3}], v7, s[16:19], s11 offen offset:{2304+128*ds}")
        e(f"buffer_load_dwordx4 v[{r+4}:{r+7}], v7, s[16:19], s11 offen offset:{2304+128*ds+16}")
        e(f"buffer_load_dwordx4 v[{r+8}:{r+11}], v7, s[16:19], s11 offen offset:{128*ds}")
        e(f"buffer_load_dwordx4 v[{r+12}:{r+15}], v7, s[16:19], s11 offen offset:{128*ds+16}")
    e("L_k1_noprep:")
    e("s_mul_i32 s10, s9, 18432")
    for s in range(18):
        if s and s % 4 == 0:
            e("s_add_u32 s10, s10, 4096")
        e(f"buffer_load_dwordx4 v[{A+4*s}:{A+4*s+3}], v5, s[20:23], s10 offen offset:{1024*(s%4)}")
    e("""
    s_cmp_ge_u32 s6, 9
    s_cbranch_scc1 L_k1_noprep2
    s_lshl_b32 s11, s6, 12
    v_add_u32 v7, s11, v5
    s_waitcnt vmcnt(18)
    """)
    k.stamp(2)
    for ds in range(2):
        for nt in range(2):
            r = 8 + 8*ds + 4*nt; m = 24 + 16*ds
            for d in range(4):
                e(f"v_lshlrev_b32 v56, 16, v{r+d}")
                e(f"v_and_b32 v57, 0xffff0000, v{r+d}")
                e(f"v_fma_f32 v56, v56, v{m+2*d}, v{m+8+2*d}")
                e(f"v_fma_f32 v57, v57, v{m+2*d+1}, v{m+8+2*d+1}")
                e(f"v_cvt_pk_bf16_f32 v{r+d}, v56, v57")
            e(f"ds_write_b128 v7, v[{r}:{r+3}] offset:{2048*ds + 1024*nt}")
    e("L_k1_noprep2:")
    k.stamp(3)
    e("s_waitcnt lgkmcnt(0)\ns_barrier")
    k.stamp(4)
    DEPTH = 4
    def rd(s):
        b = 8 + 8*(s % 6)
        e(f"ds_read_b128 v[{b}:{b+3}], v5 offset:{2048*s}")
        e(f"ds_read_b128 v[{b+4}:{b+7}], v5 offset:{2048*s+1024}")
    for s in range(DEPTH): rd(s)
    for s in range(18):
        if s + DEPTH < 18: rd(s + DEPTH)
        outstanding = 2 * (min(18, s + DEPTH + 1) - (s + 1))
        e(f"s_waitcnt vmcnt({17-s}) lgkmcnt({outstanding})")
        b = 8 + 8*(s % 6)
        c0 = "0" if s == 0 else "v[56:59]"; c1 = "0" if s == 0 else "v[60:63]"
        e(f"v_mfma_f32_16x16x32_bf16 v[56:59], v[{A+4*s}:{A+4*s+3}], v[{b}:{b+3}], {c0}")
        e(f"v_mfma_f32_16x16x32_bf16 v[60:63], v[{A+4*s}:{A+4*s+3}], v[{b+4}:{b+7}], {c1}")
    k.stamp(5)
    k.srd(12, 4, WS_Q, ACT_BYTES)
    k.srd(16, 4, WS_KV, KV_BYTES)
    k.srd(24, 4, WS_KNORM, 512)
    cs = math.log2(math.e) / math.sqrt(DH)
    e(f"""
    s_cmp_ge_u32 s9, 36
    s_cbranch_scc1 L_k1_kv
    s_mov_b32 s28, {hex(f32bits(cs))}
    v_mul_u32_u24 v6, 1152, v3
    v_lshl_add_u32 v6, v4, 3, v6
    s_mul_i32 s10, s8, 36864
    s_lshl_b32 s11, s9, 5
    s_add_u32 s10, s10, s11
    s_add_u32 s11, s10, 18432
    """)
    for i in range(8): e(f"v_mul_f32 v{56+i}, s28, v{56+i}")
    for i in range(4): e(f"v_cvt_pk_bf16_f32 v{8+i}, v{56+2*i}, v{57+2*i}")
    e("""
    buffer_store_dwordx2 v[8:9], v6, s[12:15], s10 offen
    buffer_store_dwordx2 v[10:11], v6, s[12:15], s11 offen
    """)
    if stamps:
        e("s_waitcnt vmcnt(0)")
        k.stamp(6)
        k.stamp_dump(7, 6, 100)
    e("""
    s_endpgm
    L_k1_kv:
    """)
    e(f"""
    s_and_b32 s10, s8, 15
    s_lshl_b32 s10, s10, 2
    s_lshr_b32 s11, s8, 4
    s_add_u32 s10, s10, s11
    s_mul_i32 s10, s10, {KVBLK}
    s_lshl_b32 s29, s8, 3
    """)
    for i in range(4): e(f"v_cvt_pk_bf16_f32 v{8+i}, v{56+2*i}, v{57+2*i}")
    e("""
    s_cmp_ge_u32 s9, 38
    s_cbranch_scc1 L_k1_v
    """)
    for i in range(4):
        e(f"v_lshlrev_b32 v{16+2*i}, 16, v{8+i}")
        e(f"v_and_b32 v{17+2*i}, 0xffff0000, v{8+i}")
    e("""
    s_cmp_eq_u32 s9, 37
    s_cbranch_scc1 L_k1_k2
    """)
    e("""
    v_lshrrev_b32 v6, 1, v4
    v_lshlrev_b32 v6, 9, v6
    v_lshl_add_u32 v6, v3, 4, v6
    v_and_b32 v7, 1, v4
    v_lshl_add_u32 v6, v7, 3, v6
    buffer_store_dwordx2 v[8:9], v6, s[16:19], s10 offen
    buffer_store_dwordx2 v[10:11], v6, s[16:19], s10 offen offset:256
    v_mul_f32 v24, v16, v16
    v_mul_f32 v25, v20, v20
    v_fmac_f32 v24, v17, v17
    v_fmac_f32 v25, v21, v21
    v_fmac_f32 v24, v18, v18
    v_fmac_f32 v25, v22, v22
    v_fmac_f32 v24, v19, v19
    v_fmac_f32 v25, v23, v23
    v_mov_b32 v26, v24
    v_mov_b32 v27, v25
    s_nop 1
    v_permlane16_swap_b32 v24, v26
    v_permlane16_swap_b32 v25, v27
    s_nop 1
    v_add_f32 v24, v24, v26
    v_add_f32 v25, v25, v27
    v_mov_b32 v26, v24
    v_mov_b32 v27, v25
    s_nop 1
    v_permlane32_swap_b32 v24, v26
    v_permlane32_swap_b32 v25, v27
    s_nop 1
    v_add_f32 v24, v24, v26
    v_add_f32 v25, v25, v27
    s_branch L_k1_norm
    L_k1_k2:
    v_lshlrev_b32 v6, 2, v3
    v_mul_f32 v24, v16, v16
    v_mul_f32 v25, v20, v20
    v_fmac_f32 v24, v17, v17
    v_fmac_f32 v25, v21, v21
    s_add_u32 s29, s29, 4
    v_cmp_gt_u32 vcc, 16, v2
    s_and_saveexec_b64 s[30:31], vcc
    buffer_store_dword v8, v6, s[16:19], s10 offen offset:1024
    buffer_store_dword v10, v6, s[16:19], s10 offen offset:1088
    s_mov_b64 exec, s[30:31]
    L_k1_norm:
    v_max_f32 v24, v24, v25
    """)
    for rot in (1, 2, 4, 8):
        e("s_nop 1")
        e(f"v_max_f32_dpp v24, v24, v24 row_ror:{rot} row_mask:0xf bank_mask:0xf")
    e("""
    v_mov_b32 v6, 0
    v_cmp_eq_u32 vcc, 0, v2
    s_and_saveexec_b64 s[30:31], vcc
    buffer_store_dword v24, v6, s[24:27], s29 offen
    s_endpgm
    L_k1_v:
    """)
    e("""
    v_lshrrev_b32 v6, 2, v3
    v_and_b32 v6, 1, v6
    v_mul_u32_u24 v6, 304, v6
    v_lshrrev_b32 v7, 3, v3
    v_lshl_add_u32 v6, v7, 3, v6
    v_and_b32 v7, 3, v3
    v_lshl_add_u32 v6, v7, 1, v6
    v_lshl_add_u32 v6, v4, 6, v6
    s_add_u32 s10, s10, 1152
    s_cmp_eq_u32 s9, 39
    s_cbranch_scc1 L_k1_v2
    """)
    for nt in range(2):
        for r in range(4):
            op = "buffer_store_short" + ("_d16_hi" if r & 1 else "")
            e(f"{op} v{8+2*nt+r//2}, v6, s[16:19], s10 offen offset:{608*nt + 16*r}")
    e("""
    s_endpgm
    L_k1_v2:
    v_mov_b32 v9, 0x3f80
    v_cmp_gt_u32 vcc, 16, v2
    s_and_saveexec_b64 s[30:31], vcc
    """)
    for nt in range(2):
        e(f"buffer_store_short v{8+2*nt}, v6, s[16:19], s10 offen offset:{608*nt + 256}")
        e(f"buffer_store_short_d16_hi v{8+2*nt}, v6, s[16:19], s10 offen offset:{608*nt + 272}")
        e(f"buffer_store_short v9, v6, s[16:19], s10 offen offset:{608*nt + 288}")
    e("L_k1_end:\ns_endpgm")
    return k
```

```python
from asmlib import *
from layout import *
import math

QA1, QA2, QB1, QB2 = 8, 12, 14, 18
KB = [(20, 24), (26, 30)]
VB = [32, 40]
SA, SB, PA, PB, OA, OB = 48, 64, 80, 88, 96, 112
RL = 128

def relayout_setup(k, rnd, vo):
    e = k.e
    e(f"s_add_u32 s48, s36, {rnd*2048}")
    lw2 = k.label("rl_w2"); lwo = k.label("rl_wo"); ld = k.label("rl_done")
    e(f"""
    s_cmp_ge_u32 s48, 10368
    s_cbranch_scc1 {lwo}
    s_cmp_ge_u32 s48, 5184
    s_cbranch_scc1 {lw2}
    s_mul_i32 s49, s48, 58255
    s_lshr_b32 s49, s49, 24
    s_mul_i32 s50, s49, 288
    s_sub_u32 s50, s48, s50
    s_mov_b32 s40, s24
    s_mov_b32 s41, s25
    s_mov_b32 s45, 9216
    s_mul_i32 s47, s50, 18
    s_add_u32 s47, s47, s49
    s_lshl_b32 s47, s47, 10
    s_add_u32 s47, s47, {WS_W1F}
    s_mov_b32 s51, 4
    s_branch {ld}
    {lw2}:
    s_sub_u32 s48, s48, 5184
    s_mul_i32 s49, s48, 58255
    s_lshr_b32 s49, s49, 21
    s_mul_i32 s50, s49, 36
    s_sub_u32 s50, s48, s50
    s_mov_b32 s40, s26
    s_mov_b32 s41, s27
    s_mov_b32 s45, 1152
    s_mul_i32 s52, s49, 3641
    s_lshr_b32 s52, s52, 16
    s_mul_i32 s53, s52, 18
    s_sub_u32 s53, s49, s53
    s_mul_i32 s47, s52, 36
    s_add_u32 s47, s47, s50
    s_mul_i32 s47, s47, 18
    s_add_u32 s47, s47, s53
    s_lshl_b32 s47, s47, 10
    s_add_u32 s47, s47, {WS_W2F}
    s_mov_b32 s51, 4
    s_branch {ld}
    {lwo}:
    s_sub_u32 s48, s48, 10368
    s_min_u32 s54, s48, 647
    s_mul_i32 s49, s54, 58255
    s_lshr_b32 s49, s49, 21
    s_mul_i32 s50, s49, 36
    s_sub_u32 s50, s54, s50
    s_mov_b32 s40, s28
    s_mov_b32 s41, s29
    s_mov_b32 s45, 1152
    s_mul_i32 s47, s50, 18
    s_add_u32 s47, s47, s49
    s_lshl_b32 s47, s47, 10
    s_add_u32 s47, s47, {WS_WO}
    s_mov_b32 s51, 8
    {ld}:
    s_mov_b32 s42, 5308416
    s_mov_b32 s43, 0x20000
    s_mul_i32 s44, s49, s45
    s_lshl_b32 s44, s44, 5
    s_lshl_b32 s54, s50, 5
    s_add_u32 s44, s44, s54
    s_mul_i32 s54, s51, s45
    s_cmp_eq_u32 s51, 4
    s_cselect_b32 s46, 13, 1
    s_mul_i32 s46, s46, s45
    v_mul_lo_u32 v{vo}, s54, v5
    v_lshl_add_u32 v{vo}, v4, 1, v{vo}
    """)

def relayout_loads(k, base, vo):
    out = []
    for j in range(8):
        out.append(f"buffer_load_ushort v{base+j}, v{vo}, s[40:43], s44 offen")
        if j < 7:
            out.append(f"s_add_u32 s44, s44, s{46 if j == 3 else 45}")
    return out

def gen_k2(stamps=False):
    k = Kernel("k2_kernel", grid=256, block=512, lds=KV_BYTES, vgpr=192, sgpr=100)
    k.stamps = stamps
    e = k.e
    k.stamp(0)
    e("""
    s_cmp_ge_u32 s2, 256
    s_cbranch_scc1 L_k2_end
    s_load_dwordx2 s[4:5], s[0:1], 96
    s_load_dwordx4 s[24:27], s[0:1], 48
    s_load_dwordx2 s[28:29], s[0:1], 32
    v_lshrrev_b32 v1, 6, v0
    v_and_b32 v2, 63, v0
    v_readfirstlane_b32 s6, v1
    v_and_b32 v3, 31, v2
    v_lshrrev_b32 v6, 5, v2
    v_and_b32 v4, 15, v2
    v_lshrrev_b32 v5, 4, v2
    v_lshlrev_b32 v7, 4, v2
    s_and_b32 s7, s6, 3
    s_lshr_b32 s8, s6, 2
    s_lshl_b32 s9, s2, 3
    s_lshl_b32 s10, s7, 1
    s_add_u32 s9, s9, s10
    s_lshl_b32 s36, s2, 3
    s_add_u32 s36, s36, s6
    s_waitcnt lgkmcnt(0)
    """)
    k.srd(12, 4, WS_Q, ACT_BYTES)
    k.srd(16, 4, WS_KV, KV_BYTES)
    k.srd(20, 4, WS_KNORM, 512)
    e("""
    v_mul_u32_u24 v1, 36, v3
    v_lshl_add_u32 v128, v6, 4, v1
    s_mul_i32 s10, s9, 1152
    v_lshlrev_b32 v129, 3, v2
    """)
    e(f"buffer_load_dwordx4 v[{QA1}:{QA1+3}], v128, s[12:15], s10 offen")
    e(f"buffer_load_dword v{QA2}, v1, s[12:15], s10 offen offset:32")
    e(f"buffer_load_dwordx4 v[{QB1}:{QB1+3}], v128, s[12:15], s10 offen offset:1152")
    e(f"buffer_load_dword v{QB2}, v1, s[12:15], s10 offen offset:1184")
    e("buffer_load_dwordx2 v[130:131], v129, s[20:23], 0 offen")
    e("s_lshl_b32 s11, s6, 10")
    for r in range(19):
        e("s_mov_b32 m0, s11")
        e("s_nop 0")
        e("buffer_load_dwordx4 v7, s[16:19], s11 offen lds")
        if r < 18: e("s_add_u32 s11, s11, 8192")
    e(f"""
    s_mul_i32 s11, s8, {KVBLK}
    v_add_u32 v132, s11, v7
    v_lshlrev_b32 v133, 2, v3
    s_add_u32 s30, s11, 1024
    v_add_u32 v133, s30, v133
    v_mov_b32 v134, 4
    v_subrev_u32 v135, 20, v3
    v_cmp_gt_u32 vcc, 8, v135
    s_nop 1
    v_cndmask_b32 v134, v134, 0, vcc
    v_cmp_gt_u32 vcc, 19, v3
    s_nop 1
    v_cndmask_b32 v134, v134, v3, vcc
    v_lshlrev_b32 v134, 4, v134
    v_mul_u32_u24 v135, 304, v6
    s_add_u32 s30, s11, 1152
    v_add3_u32 v134, v134, v135, s30
    v_mov_b32 v{KB[0][1]+1}, 0x3f803f80
    v_mov_b32 v{KB[1][1]+1}, 0x3f803f80
    """)
    for i in range(16):
        e(f"v_mov_b32 v{OA+i}, 0")
        e(f"v_mov_b32 v{OB+i}, 0")
    e("s_waitcnt vmcnt(19)")
    k.stamp(1)
    for rot in (1, 2, 4, 8):
        e(f"v_max_f32_dpp v130, v130, v130 row_ror:{rot} row_mask:0xf bank_mask:0xf")
        e(f"v_max_f32_dpp v131, v131, v131 row_ror:{rot} row_mask:0xf bank_mask:0xf")
        e("s_nop 0")
    for op in ("v_permlane16_swap_b32", "v_permlane32_swap_b32"):
        e(f"""
        v_mov_b32 v136, v130
        v_mov_b32 v137, v131
        s_nop 1
        {op} v130, v136
        {op} v131, v137
        s_nop 1
        v_max_f32 v130, v130, v136
        v_max_f32 v131, v131, v137
        """)
    e("v_add_f32 v130, v130, v131")
    e(f"""
    v_cmp_eq_u32 vcc, 0, v6
    s_nop 1
    v_cndmask_b32 v{QA2}, 0, v{QA2}, vcc
    v_cndmask_b32 v{QB2}, 0, v{QB2}, vcc
    """)
    for (q1, q2, n) in ((QA1, QA2, 138), (QB1, QB2, 139)):
        e(f"v_mov_b32 v{n}, 0")
        for r in [q1, q1+1, q1+2, q1+3, q2]:
            e(f"v_lshlrev_b32 v136, 16, v{r}")
            e(f"v_and_b32 v137, 0xffff0000, v{r}")
            e(f"v_fmac_f32 v{n}, v136, v136")
            e(f"v_fmac_f32 v{n}, v137, v137")
    e("""
    v_mov_b32 v136, v138
    v_mov_b32 v137, v139
    s_nop 1
    v_permlane32_swap_b32 v138, v136
    v_permlane32_swap_b32 v139, v137
    s_nop 1
    v_add_f32 v138, v138, v136
    v_add_f32 v139, v139, v137
    v_mul_f32 v138, v138, v130
    v_mul_f32 v139, v139, v130
    v_sqrt_f32 v138, v138
    v_sqrt_f32 v139, v139
    s_nop 0
    v_max_f32 v136, v138, v139
    v_mov_b32 v137, 0x42700000
    v_cmp_nle_f32 vcc, v136, v137
    s_cbranch_vccnz L_k2_fallback
    L_k2_shift:
    """)
    for (q2, n) in ((QA2, 138), (QB2, 139)):
        e(f"""
        v_sub_f32 v{n}, 0, v{n}
        v_cvt_pk_bf16_f32 v136, v{n}, v{n}
        v_lshlrev_b32 v136, 16, v136
        v_sub_f32 v{n}, v{n}, v136
        v_cvt_pk_bf16_f32 v137, v{n}, v{n}
        v_lshlrev_b32 v137, 16, v137
        v_sub_f32 v{n}, v{n}, v137
        v_cvt_pk_bf16_f32 v136, v136, v137
        v_cvt_pk_bf16_f32 v137, v{n}, 0
        v_cmp_eq_u32 vcc, 0, v6
        s_nop 1
        v_cndmask_b32 v{q2+1}, v137, v136, vcc
        """)
    def off(i): return (i % 13) * 2 * KVBLK
    def rdK(i):
        k1, k2 = KB[i % 2]
        return [f"ds_read_b128 v[{k1}:{k1+3}], v132 offset:{off(i)}", f"ds_read_b32 v{k2}, v133 offset:{off(i)}"]
    def rdV(i):
        v = VB[i % 2]
        return [f"ds_read_b128 v[{v}:{v+3}], v134 offset:{off(i)}", f"ds_read_b128 v[{v+4}:{v+7}], v134 offset:{off(i)+608}"]
    def bumpK(): return [f"v_add_u32 v132, {13*2*KVBLK}, v132", f"v_add_u32 v133, {13*2*KVBLK}, v133"]
    def bumpV(): return [f"v_add_u32 v134, {13*2*KVBLK}, v134"]
    def QK(S, q1, q2, i):
        k1, k2 = KB[i % 2]
        return [f"v_mfma_f32_32x32x8_bf16 v[{S}:{S+15}], v[{k2}:{k2+1}], v[{q2}:{q2+1}], 0",
                f"v_mfma_f32_32x32x16_bf16 v[{S}:{S+15}], v[{k1}:{k1+3}], v[{q1}:{q1+3}], v[{S}:{S+15}]"]
    def PV(O, P, i):
        v = VB[i % 2]
        return [f"v_mfma_f32_32x32x16_bf16 v[{O}:{O+15}], v[{v}:{v+3}], v[{P}:{P+3}], v[{O}:{O+15}]",
                f"v_mfma_f32_32x32x16_bf16 v[{O}:{O+15}], v[{v+4}:{v+7}], v[{P+4}:{P+7}], v[{O}:{O+15}]"]
    def phase(mf, S, P, extra=()):
        extra = list(extra)
        mf = list(mf) + [None] * (4 - len(mf))
        for gidx in range(4):
            if mf[gidx]: e(mf[gidx])
            if gidx > 0:
                for c in range(2):
                    a = 4*(gidx-1) + 2*c
                    e(f"v_cvt_pk_bf16_f32 v{P + a//2}, v{S+a}, v{S+a+1}")
            for x in range(4):
                e(f"v_exp_f32 v{S+4*gidx+x}, v{S+4*gidx+x}")
            n = (len(extra) + (3 - gidx)) // (4 - gidx)
            for _ in range(n): e(extra.pop(0))
        e("s_nop 0")
        for c in range(2):
            a = 12 + 2*c
            e(f"v_cvt_pk_bf16_f32 v{P + a//2}, v{S+a}, v{S+a+1}")
    e("s_waitcnt vmcnt(17)\ns_barrier")
    k.stamp(2)
    for x in rdK(0) + rdV(0): e(x)
    e("s_waitcnt lgkmcnt(0)")
    for x in QK(SA, QA1, QA2, 0): e(x)
    e("s_nop 7\ns_nop 3")
    NIT = 32
    side = {}
    for i in range(NIT):
        if i == 2: e("s_waitcnt vmcnt(11)\ns_barrier")
        if i == 12: e("s_waitcnt vmcnt(0)\ns_barrier")
        ex2 = []
        if 13 <= i < 19:
            r = i - 13
            relayout_setup(k, r, 140)
            e(f"s_mov_b32 s{56+r}, s47")
            ex2 = relayout_loads(k, RL + 16 + 8*r, 140)
        if 25 <= i < 31:
            r = i - 25
            b = RL + 16 + 8*r
            ex2 = [f"s_waitcnt vmcnt({8*(5-r) + 0})"] if r == 0 else [f"s_waitcnt vmcnt({8*(5-r) + r})"]
            ex2 += [f"v_lshl_or_b32 v{b+x}, v{b+2*x+1}, 16, v{b+2*x}" for x in range(4)]
            ex2 += [f"buffer_store_dwordx4 v[{b}:{b+3}], v7, s[32:35], s{56+r} offen"]
        ex1 = []
        if i + 1 < NIT:
            if (i + 1) % 13 == 0: ex1 += bumpK()
            ex1 += rdK(i + 1)
        mf = QK(SB, QB1, QB2, i) + (PV(OB, PB, i-1) if i > 0 else [])
        phase(mf, SA, PA, ex1)
        e("s_waitcnt lgkmcnt(0)")
        exv = []
        if i + 1 < NIT:
            if (i + 1) % 13 == 0: exv += bumpV()
            exv += rdV(i + 1)
        mf = (QK(SA, QA1, QA2, i+1) if i + 1 < NIT else [None, None]) + PV(OA, PA, i)
        phase(mf, SB, PB, exv + ex2)
        if i == 12:
            k.srd(32, 4, 0, WS_N1)
    e("s_nop 1")
    for x in PV(OB, PB, NIT-1): e(x)
    k.stamp(3)
    e(f"""
    s_barrier
    s_mul_i32 s11, s6, 3072
    v_add_u32 v132, s11, v7
    s_xor_b32 s30, s6, 4
    s_mul_i32 s30, s30, 3072
    v_add_u32 v133, s30, v7
    s_nop 7
    s_cmp_eq_u32 s8, 0
    s_cbranch_scc1 L_k2_h0
    ds_write_b128 v132, v[{OA}:{OA+3}]
    ds_write_b128 v132, v[{OA+4}:{OA+7}] offset:1024
    ds_write_b128 v132, v[{OA+8}:{OA+11}] offset:2048
    """)
    for i in range(12): e(f"v_mov_b32 v{SA+i}, v{OB+i}")
    e(f"""
    s_add_u32 s9, s9, 1
    s_branch L_k2_x
    L_k2_h0:
    ds_write_b128 v132, v[{OB}:{OB+3}]
    ds_write_b128 v132, v[{OB+4}:{OB+7}] offset:1024
    ds_write_b128 v132, v[{OB+8}:{OB+11}] offset:2048
    """)
    for i in range(12): e(f"v_mov_b32 v{SA+i}, v{OA+i}")
    e(f"""
    L_k2_x:
    s_waitcnt lgkmcnt(0)
    s_barrier
    ds_read_b128 v[{SB}:{SB+3}], v133
    ds_read_b128 v[{SB+4}:{SB+7}], v133 offset:1024
    ds_read_b128 v[{SB+8}:{SB+11}], v133 offset:2048
    """)
    k.srd(12, 4, WS_O, ACT_BYTES)
    e("""
    s_mul_i32 s10, s9, 1152
    v_mul_u32_u24 v1, 36, v3
    v_lshl_add_u32 v128, v6, 3, v1
    s_waitcnt lgkmcnt(0)
    """)
    for i in range(11): e(f"v_add_f32 v{SA+i}, v{SA+i}, v{SB+i}")
    e(f"""
    v_mov_b32 v136, v{SA+10}
    s_nop 1
    v_permlane32_swap_b32 v{SA+10}, v136
    s_nop 1
    v_rcp_f32 v136, v{SA+10}
    s_nop 0
    """)
    for i in range(10): e(f"v_mul_f32 v{SA+i}, v{SA+i}, v136")
    for i in range(5): e(f"v_cvt_pk_bf16_f32 v{PA+i}, v{SA+2*i}, v{SA+2*i+1}")
    e(f"""
    buffer_store_dwordx2 v[{PA}:{PA+1}], v128, s[12:15], s10 offen
    buffer_store_dwordx2 v[{PA+2}:{PA+3}], v128, s[12:15], s10 offen offset:16
    v_cmp_eq_u32 vcc, 0, v6
    s_and_saveexec_b64 s[30:31], vcc
    buffer_store_dword v{PA+4}, v1, s[12:15], s10 offen offset:32
    """)
    if stamps:
        e("s_waitcnt vmcnt(0)")
        k.stamp(4)
        k.stamp_dump(5, 6, 100)
    e("L_k2_end:\ns_endpgm")
    e(f"""
    L_k2_fallback:
    v_mov_b32 v{QA2+1}, 0
    v_mov_b32 v{QB2+1}, 0
    v_mov_b32 v138, 0xff7fffff
    v_mov_b32 v139, 0xff7fffff
    v_lshlrev_b32 v136, 2, v3
    s_mov_b32 s30, 0
    L_k2_fb_loop:
    buffer_load_dwordx4 v[20:23], v7, s[16:19], s30 offen
    buffer_load_dword v24, v136, s[16:19], s30 offen offset:1024
    s_waitcnt vmcnt(0)
    """)
    for x in QK(SA, QA1, QA2, 0) + QK(SB, QB1, QB2, 0): e(x)
    e("s_nop 15")
    for i in range(0, 16, 2):
        e(f"v_max3_f32 v138, v138, v{SA+i}, v{SA+i+1}")
    for i in range(0, 16, 2):
        e(f"v_max3_f32 v139, v139, v{SB+i}, v{SB+i+1}")
    e(f"""
    s_add_u32 s30, s30, {KVBLK}
    s_cmp_lt_u32 s30, {64*KVBLK}
    s_cbranch_scc1 L_k2_fb_loop
    v_mov_b32 v136, v138
    v_mov_b32 v137, v139
    s_nop 1
    v_permlane32_swap_b32 v138, v136
    v_permlane32_swap_b32 v139, v137
    s_nop 1
    v_max_f32 v138, v138, v136
    v_max_f32 v139, v139, v137
    s_branch L_k2_shift
    """)
    return k
```

```python
from asmlib import *
from layout import *

def xg_sum(e, regs, tmp):
    for op in ("v_permlane16_swap_b32", "v_permlane32_swap_b32"):
        for r, t in zip(regs, tmp): e(f"v_mov_b32 v{t}, v{r}")
        e("s_nop 1")
        for r, t in zip(regs, tmp): e(f"{op} v{r}, v{t}")
        e("s_nop 1")
        for r, t in zip(regs, tmp): e(f"v_add_f32 v{r}, v{r}, v{t}")

def gen_k3(stamps=False):
    k = Kernel("k3_kernel", grid=256, block=576, lds=36*1024 + 4096, vgpr=168, sgpr=100)
    k.stamps = stamps
    e = k.e
    A = 64
    k.stamp(0)
    e("""
    s_cmp_ge_u32 s2, 256
    s_cbranch_scc1 L_k3_end
    s_load_dwordx2 s[4:5], s[0:1], 96
    s_load_dwordx2 s[30:31], s[0:1], 0
    v_lshrrev_b32 v1, 6, v0
    v_and_b32 v2, 63, v0
    v_readfirstlane_b32 s6, v1
    s_and_b32 s7, s2, 3
    s_lshr_b32 s8, s2, 2
    s_mul_i32 s9, s7, 9
    s_add_u32 s9, s9, s6
    v_and_b32 v3, 15, v2
    v_lshrrev_b32 v4, 4, v2
    v_lshlrev_b32 v5, 4, v2
    v_mul_u32_u24 v6, 1152, v3
    v_lshl_add_u32 v7, v4, 3, v6
    v_lshl_add_u32 v6, v4, 4, v6
    v_lshlrev_b32 v1, 4, v4
    s_mul_i32 s10, s8, 36864
    s_lshl_b32 s11, s6, 7
    s_add_u32 s11, s10, s11
    s_add_u32 s24, s11, 18432
    s_lshl_b32 s25, s6, 12
    s_waitcnt lgkmcnt(0)
    """)
    k.srd(12, 4, WS_O, ACT_BYTES)
    k.srd(16, 4, WS_MOD, 13824)
    k.srd(20, 4, WS_WO, 36*18*1024)
    k.srd(32, 30, 0, ACT_BYTES)
    for ds in range(2):
        for nt in range(2):
            e(f"s_add_u32 s26, s25, {2048*ds + 1024*nt}")
            e("s_mov_b32 m0, s26")
            if ds: e(f"s_add_u32 s27, s{11 if nt == 0 else 24}, 64")
            else: e(f"s_mov_b32 s27, s{11 if nt == 0 else 24}")
            e("buffer_load_dwordx4 v6, s[12:15], s27 offen lds")
    e("""
    s_barrier
    s_lshl_b32 s11, s9, 5
    s_add_u32 s11, s10, s11
    s_add_u32 s24, s11, 18432
    s_lshl_b32 s26, s9, 6
    s_add_u32 s27, s26, 4608
    s_add_u32 s26, s26, 9216
    buffer_load_dwordx2 v[136:137], v7, s[32:35], s11 offen
    buffer_load_dwordx2 v[138:139], v7, s[32:35], s24 offen
    buffer_load_dwordx4 v[140:143], v1, s[16:19], s27 offen
    buffer_load_dwordx4 v[144:147], v1, s[16:19], s26 offen
    s_mul_i32 s10, s9, 18432
    """)
    for s in range(18):
        if s and s % 4 == 0: e("s_add_u32 s10, s10, 4096")
        e(f"buffer_load_dwordx4 v[{A+4*s}:{A+4*s+3}], v5, s[20:23], s10 offen offset:{1024*(s%4)}")
    e("s_waitcnt vmcnt(22)\ns_barrier")
    k.stamp(1)
    DEPTH = 4
    def rd(s):
        b = 8 + 8*(s % 6)
        e(f"ds_read_b128 v[{b}:{b+3}], v5 offset:{2048*s}")
        e(f"ds_read_b128 v[{b+4}:{b+7}], v5 offset:{2048*s+1024}")
    for s in range(DEPTH): rd(s)
    for s in range(18):
        if s + DEPTH < 18: rd(s + DEPTH)
        outstanding = 2 * (min(18, s + DEPTH + 1) - (s + 1))
        e(f"s_waitcnt vmcnt({17-s}) lgkmcnt({outstanding})")
        b = 8 + 8*(s % 6)
        c0 = "0" if s == 0 else "v[56:59]"; c1 = "0" if s == 0 else "v[60:63]"
        e(f"v_mfma_f32_16x16x32_bf16 v[56:59], v[{A+4*s}:{A+4*s+3}], v[{b}:{b+3}], {c0}")
        e(f"v_mfma_f32_16x16x32_bf16 v[60:63], v[{A+4*s}:{A+4*s+3}], v[{b+4}:{b+7}], {c1}")
    k.stamp(2)
    k.srd(12, 4, WS_X2, ACT_BYTES)
    k.srd(20, 4, WS_YF, ACT_BYTES)
    k.srd(36, 4, WS_STATS, 65536)
    e("""
    s_lshr_b32 s26, s8, 1
    s_mul_i32 s26, s26, 18
    s_lshr_b32 s27, s9, 1
    s_add_u32 s26, s26, s27
    s_lshl_b32 s26, s26, 2
    s_and_b32 s27, s8, 1
    s_lshl_b32 s27, s27, 1
    s_add_u32 s26, s26, s27
    s_lshl_b32 s26, s26, 10
    s_and_b32 s27, s9, 1
    s_lshl_b32 s27, s27, 3
    s_add_u32 s26, s26, s27
    """)
    for i in range(4): e(f"v_cvt_pk_bf16_f32 v{8+i}, v{56+2*i}, v{57+2*i}")
    for i in range(4):
        e(f"v_lshlrev_b32 v{56+2*i}, 16, v{8+i}")
        e(f"v_and_b32 v{57+2*i}, 0xffff0000, v{8+i}")
    for i in range(8): e(f"v_mul_f32 v{56+i}, v{56+i}, v{140+i%4}")
    for i in range(4): e(f"v_cvt_pk_bf16_f32 v{8+i}, v{56+2*i}, v{57+2*i}")
    for i in range(4):
        e(f"v_lshlrev_b32 v{56+2*i}, 16, v{8+i}")
        e(f"v_and_b32 v{57+2*i}, 0xffff0000, v{8+i}")
        e(f"v_lshlrev_b32 v{16+2*i}, 16, v{136+i}")
        e(f"v_and_b32 v{17+2*i}, 0xffff0000, v{136+i}")
    for i in range(8): e(f"v_add_f32 v{56+i}, v{56+i}, v{16+i}")
    for i in range(4): e(f"v_cvt_pk_bf16_f32 v{8+i}, v{56+2*i}, v{57+2*i}")
    e("""
    buffer_store_dwordx2 v[8:9], v7, s[12:15], s11 offen
    buffer_store_dwordx2 v[10:11], v7, s[12:15], s24 offen
    """)
    for i in range(4):
        e(f"v_lshlrev_b32 v{56+2*i}, 16, v{8+i}")
        e(f"v_and_b32 v{57+2*i}, 0xffff0000, v{8+i}")
    for i in range(8): e(f"v_mul_f32 v{16+i}, v{56+i}, v{144+i%4}")
    for i in range(4): e(f"v_cvt_pk_bf16_f32 v{12+i}, v{16+2*i}, v{17+2*i}")
    e("""
    buffer_store_dwordx2 v[12:13], v5, s[20:23], s26 offen
    buffer_store_dwordx2 v[14:15], v5, s[20:23], s26 offen offset:1024
    """)
    e("""
    v_add_f32 v24, v56, v57
    v_add_f32 v25, v60, v61
    v_add_f32 v26, v58, v59
    v_add_f32 v27, v62, v63
    v_add_f32 v24, v24, v26
    v_add_f32 v25, v25, v27
    """)
    xg_sum(e, [24, 25], [26, 27])
    e("v_mul_f32 v24, 0x3d800000, v24\nv_mul_f32 v25, 0x3d800000, v25")
    for i in range(8): e(f"v_sub_f32 v{56+i}, v{56+i}, v{24 + i//4}")
    e("v_mul_f32 v28, v56, v56\nv_mul_f32 v30, v60, v60")
    for i in range(1, 4):
        e(f"v_fmac_f32 v28, v{56+i}, v{56+i}")
        e(f"v_fmac_f32 v30, v{60+i}, v{60+i}")
    xg_sum(e, [28, 30], [26, 27])
    e("""
    v_mov_b32 v29, v28
    v_mov_b32 v28, v24
    v_mov_b32 v31, v30
    v_mov_b32 v30, v25
    s_lshl_b32 s27, s6, 8
    s_add_u32 s27, s27, 36864
    v_lshlrev_b32 v26, 3, v3
    v_add_u32 v26, s27, v26
    ds_write_b64 v26, v[28:29]
    ds_write_b64 v26, v[30:31] offset:128
    s_waitcnt lgkmcnt(0)
    s_barrier
    s_cmp_lg_u32 s6, 0
    s_cbranch_scc1 L_k3_fin
    v_and_b32 v26, 31, v2
    v_lshlrev_b32 v26, 3, v26
    """)
    for w in range(9): e(f"ds_read_b64 v[{32+2*w}:{33+2*w}], v26 offset:{36864 + 256*w}")
    e("s_waitcnt lgkmcnt(0)")
    e("v_add_f32 v28, v32, v34")
    for w in range(2, 9): e(f"v_add_f32 v28, v28, v{32+2*w}")
    e(f"v_mul_f32 v28, {hex(f32bits(1.0/9))}, v28")
    e("v_add_f32 v29, v33, v35")
    for w in range(2, 9): e(f"v_add_f32 v29, v29, v{33+2*w}")
    e("v_mov_b32 v30, 0")
    for w in range(9):
        e(f"v_sub_f32 v31, v{32+2*w}, v28")
        e(f"v_fmac_f32 v30, v31, v31")
    e("""
    v_fmac_f32 v29, 0x41800000, v30
    v_lshlrev_b32 v26, 2, v26
    s_lshl_b32 s27, s8, 10
    s_lshl_b32 s28, s7, 3
    s_add_u32 s27, s27, s28
    v_cmp_gt_u32 vcc, 32, v2
    s_and_saveexec_b64 s[28:29], vcc
    buffer_store_dwordx2 v[28:29], v26, s[36:39], s27 offen
    L_k3_fin:
    """)
    if stamps:
        e("s_waitcnt vmcnt(0)")
        k.stamp(3)
        k.stamp_dump(4, 6, 100)
    e("L_k3_end:\ns_endpgm")
    return k
```

```python
from asmlib import *
from layout import *

YB = 0; HB = 73728; CB = 147456

def gen_k4(stamps=False):
    k = Kernel("k4_kernel", grid=256, block=768, lds=150528, vgpr=168, sgpr=100)
    k.stamps = stamps
    e = k.e
    ACC = 8
    AF = 68
    BF = 104
    RS = 144
    k.stamp(0)
    e("""
    s_cmp_ge_u32 s2, 256
    s_cbranch_scc1 L_k4_end
    s_load_dwordx2 s[4:5], s[0:1], 96
    v_lshrrev_b32 v1, 6, v0
    v_and_b32 v2, 63, v0
    v_readfirstlane_b32 s6, v1
    s_and_b32 s7, s2, 7
    s_lshr_b32 s8, s2, 3
    v_and_b32 v3, 15, v2
    v_lshrrev_b32 v4, 4, v2
    v_lshlrev_b32 v5, 4, v2
    v_add_u32 v6, 18432, v5
    v_add_u32 v7, 36864, v5
    v_lshlrev_b32 v152, 5, v3
    v_and_b32 v153, 1, v3
    v_lshlrev_b32 v153, 6, v153
    v_lshl_add_u32 v153, v4, 4, v153
    s_mul_i32 s9, s8, 73728
    s_lshl_b32 s10, s6, 10
    s_add_u32 s9, s9, s10
    s_waitcnt lgkmcnt(0)
    """)
    k.srd(12, 4, WS_YF, ACT_BYTES)
    k.srd(16, 4, WS_W1F, 288*18*1024)
    k.srd(20, 4, WS_W2F, 288*18*1024)
    k.srd(24, 4, 0, 0x40000)
    for r in range(6):
        e("s_mov_b32 m0, s10")
        e("s_nop 0")
        e("buffer_load_dwordx4 v5, s[12:15], s9 offen lds")
        e("s_add_u32 s10, s10, 12288")
        e("s_add_u32 s9, s9, 12288")
    e(f"""
    s_min_u32 s10, s6, 2
    s_lshl_b32 s10, s10, 10
    s_add_u32 s9, s10, {WS_CBT}
    s_add_u32 s10, s10, {CB}
    s_mov_b32 m0, s10
    s_nop 0
    buffer_load_dwordx4 v5, s[24:27], s9 offen lds
    s_lshl_b32 s9, s8, 11
    s_add_u32 s9, s9, {WS_STATS}
    """)
    for nt in range(4):
        e(f"buffer_load_dwordx4 v[{BF+8*nt}:{BF+8*nt+3}], v152, s[24:27], s9 offen offset:{512*nt}")
        e(f"buffer_load_dwordx4 v[{BF+8*nt+4}:{BF+8*nt+7}], v152, s[24:27], s9 offen offset:{512*nt+16}")
    e("s_barrier")
    e("""
    s_mul_i32 s28, s7, 36
    s_mul_i32 s29, s6, 3
    s_add_u32 s28, s28, s29
    s_mul_i32 s28, s28, 18432
    s_mov_b32 s29, s28
    """)
    def ldA(srd, s, so):
        out = []
        if s and s % 4 == 0: out.append(f"s_add_u32 s{so}, s{so}, 4096")
        for i in range(3):
            r = AF + 12*(s % 3) + 4*i
            out.append(f"buffer_load_dwordx4 v[{r}:{r+3}], v{5+i}, s[{srd}:{srd+3}], s{so} offen offset:{1024*(s%4)}")
        return out
    for s in range(3):
        for x in ldA(16, s, 28): e(x)
    e("s_waitcnt vmcnt(9)")
    for nt in range(4):
        b = BF + 8*nt
        e(f"""
        v_add_f32 v154, v{b}, v{b+2}
        v_add_f32 v155, v{b+4}, v{b+6}
        v_add_f32 v154, v154, v155
        v_mul_f32 v154, 0.25, v154
        v_add_f32 v155, v{b+1}, v{b+3}
        v_add_f32 v156, v{b+5}, v{b+7}
        v_add_f32 v155, v155, v156
        v_sub_f32 v{b}, v{b}, v154
        v_sub_f32 v{b+2}, v{b+2}, v154
        v_sub_f32 v{b+4}, v{b+4}, v154
        v_sub_f32 v{b+6}, v{b+6}, v154
        v_mul_f32 v156, v{b}, v{b}
        v_fmac_f32 v156, v{b+2}, v{b+2}
        v_fmac_f32 v156, v{b+4}, v{b+4}
        v_fmac_f32 v156, v{b+6}, v{b+6}
        v_fmac_f32 v155, 0x43100000, v156
        v_mov_b32 v156, {hex(f32bits(1e-5))}
        v_fmac_f32 v156, {hex(f32bits(1.0/576))}, v155
        v_rsq_f32 v{RS+nt}, v156
        s_nop 0
        v_mul_f32 v{RS+4+nt}, v154, v{RS+nt}
        v_sub_f32 v{RS+4+nt}, 0, v{RS+4+nt}
        """)
    e("s_barrier")
    k.stamp(1)
    def rdB(phase, s):
        b = BF + 20*(s % 2)
        base = YB if phase == 1 else HB
        out = []
        for nt in range(4):
            off = base + (s*4 + nt)*1024
            areg, o = (5, off) if off < 65536 else ((157, off - 65536) if off < 131072 else (158, off - 131072))
            out.append(f"ds_read_b128 v[{b+4*nt}:{b+4*nt+3}], v{areg} offset:{o}")
        if phase == 1:
            out.append(f"ds_read_b128 v[{b+16}:{b+19}], v159 offset:{128*s}")
        return out
    e(f"v_add_u32 v157, 65536, v5\nv_add_u32 v158, 131072, v5\nv_add_u32 v159, {CB}, v153")
    def gemm(phase, srd, so, nsrd, nso):
        NT = 5 if phase == 1 else 4
        for x in rdB(phase, 0): e(x)
        for s in range(18):
            if s + 1 < 18:
                for x in rdB(phase, s+1): e(x)
                e(f"s_waitcnt vmcnt(6) lgkmcnt({NT})")
            else:
                e(f"s_waitcnt vmcnt(6) lgkmcnt(0)")
            b = BF + 20*(s % 2)
            for i in range(3):
                a = AF + 12*(s % 3) + 4*i
                for nt in range(NT):
                    c = ACC + 20*i + 4*nt
                    cc = "0" if s == 0 else f"v[{c}:{c+3}]"
                    e(f"v_mfma_f32_16x16x32_bf16 v[{c}:{c+3}], v[{a}:{a+3}], v[{b+4*nt}:{b+4*nt+3}], {cc}")
            if s + 3 < 18:
                for x in ldA(srd, s+3, so): e(x)
            elif nsrd is not None:
                for x in ldA(nsrd, s+3-18, nso): e(x)
            else:
                pass
    gemm(1, 16, 28, 20, 29)
    k.stamp(2)
    e("""
    s_mul_i32 s30, s6, 3
    s_nop 7
    """)
    for i in range(3):
        c5 = ACC + 20*i + 16
        e(f"""
        s_add_u32 s31, s30, {i}
        s_lshr_b32 s32, s31, 1
        s_lshl_b32 s32, s32, 12
        s_and_b32 s31, s31, 1
        s_lshl_b32 s31, s31, 3
        s_add_u32 s32, s32, s31
        s_add_u32 s32, s32, {HB}
        v_add_u32 v160, s32, v5
        """)
        for r in range(4):
            e(f"v_mov_b32_dpp v{BF+r}, v{c5+r} row_newbcast:0 row_mask:0xf bank_mask:0xf")
            e(f"v_mov_b32_dpp v{BF+4+r}, v{c5+r} row_newbcast:1 row_mask:0xf bank_mask:0xf")
        for nt in range(4):
            c = ACC + 20*i + 4*nt
            for r in range(4):
                e(f"v_fma_f32 v{BF+8+r}, v{BF+r}, v{RS+4+nt}, v{BF+4+r}")
            for r in range(4):
                e(f"v_fma_f32 v{c+r}, v{c+r}, v{RS+nt}, v{BF+8+r}")
            e(f"v_cvt_pk_bf16_f32 v{c}, v{c}, v{c+1}")
            e(f"v_cvt_pk_bf16_f32 v{c+1}, v{c+2}, v{c+3}")
            e(f"v_pk_max_i16 v{c}, v{c}, 0")
            e(f"v_pk_max_i16 v{c+1}, v{c+1}, 0")
            e(f"ds_write_b64 v160, v[{c}:{c+1}] offset:{1024*nt}")
    e("s_waitcnt lgkmcnt(0)\ns_barrier")
    k.stamp(3)
    NT = 4
    for x in rdB(2, 0): e(x)
    for s in range(18):
        vm = 6 if s + 3 <= 18 - 0 and s <= 15 else (3 if s == 16 else 0)
        if s + 1 < 18:
            for x in rdB(2, s+1): e(x)
            e(f"s_waitcnt vmcnt({vm}) lgkmcnt({NT})")
        else:
            e(f"s_waitcnt vmcnt({vm}) lgkmcnt(0)")
        b = BF + 20*(s % 2)
        for i in range(3):
            a = AF + 12*(s % 3) + 4*i
            for nt in range(NT):
                c = ACC + 20*i + 4*nt
                cc = "0" if s == 0 else f"v[{c}:{c+3}]"
                e(f"v_mfma_f32_16x16x32_bf16 v[{c}:{c+3}], v[{a}:{a+3}], v[{b+4*nt}:{b+4*nt+3}], {cc}")
        if s + 3 < 18:
            for x in ldA(20, s+3, 29): e(x)
    k.stamp(4)
    k.srd(12, 4, WS_PART, 8*ACT_BYTES)
    e("""
    s_lshl_b32 s9, s7, 5
    s_add_u32 s9, s9, s8
    s_mul_i32 s9, s9, 36
    s_add_u32 s9, s9, s30
    s_lshl_b32 s9, s9, 11
    s_nop 3
    """)
    for i in range(3):
        for np_ in range(2):
            c = ACC + 20*i + 8*np_
            o = BF + 8*i + 4*np_
            for q in range(4):
                e(f"v_cvt_pk_bf16_f32 v{o+q}, v{c+2*q}, v{c+2*q+1}")
            if i == 2:
                e(f"s_add_u32 s10, s9, 4096")
                e(f"buffer_store_dwordx4 v[{o}:{o+3}], v5, s[12:15], s10 offen offset:{1024*np_}")
            else:
                e(f"buffer_store_dwordx4 v[{o}:{o+3}], v5, s[12:15], s9 offen offset:{2048*i + 1024*np_}")
    if stamps:
        e("s_waitcnt vmcnt(0)")
        k.stamp(5)
        k.stamp_dump(6, 6, 100)
    e("L_k4_end:\ns_endpgm")
    return k
```

```python
from asmlib import *
from layout import *

def gen_k5(stamps=False):
    k = Kernel("k5_kernel", grid=576, block=256, lds=0, vgpr=64, sgpr=48)
    e = k.e
    e("""
    s_cmp_ge_u32 s2, 576
    s_cbranch_scc1 L_k5_end
    s_load_dwordx2 s[4:5], s[0:1], 96
    s_load_dwordx2 s[6:7], s[0:1], 80
    v_lshrrev_b32 v1, 6, v0
    v_and_b32 v2, 63, v0
    v_readfirstlane_b32 s8, v1
    s_lshl_b32 s9, s2, 2
    s_add_u32 s9, s9, s8
    s_mul_i32 s10, s9, 58255
    s_lshr_b32 s10, s10, 22
    s_mul_i32 s11, s10, 72
    s_sub_u32 s11, s9, s11
    s_and_b32 s24, s11, 1
    s_lshr_b32 s11, s11, 1
    v_and_b32 v3, 15, v2
    v_lshrrev_b32 v4, 4, v2
    v_lshlrev_b32 v5, 4, v2
    v_mul_u32_u24 v6, 1152, v3
    v_lshl_add_u32 v6, v4, 3, v6
    v_lshlrev_b32 v7, 4, v4
    s_lshl_b32 s25, s9, 10
    s_lshl_b32 s26, s10, 2
    s_lshl_b32 s27, s24, 1
    s_add_u32 s26, s26, s27
    s_mul_i32 s26, s26, 18432
    s_lshl_b32 s27, s11, 5
    s_add_u32 s26, s26, s27
    s_add_u32 s27, s26, 18432
    s_lshl_b32 s28, s11, 6
    s_add_u32 s28, s28, 11520
    s_waitcnt lgkmcnt(0)
    """)
    k.srd(12, 4, WS_PART, 8*ACT_BYTES)
    k.srd(16, 4, WS_X2, ACT_BYTES)
    k.srd(20, 4, WS_MOD, 13824)
    k.srd(32, 6, 0, ACT_BYTES)
    for sl in range(8):
        e(f"buffer_load_dwordx4 v[{8+4*sl}:{11+4*sl}], v5, s[12:15], s25 offen")
        if sl < 7: e(f"s_add_u32 s25, s25, {ACT_BYTES}")
    e("""
    buffer_load_dwordx2 v[40:41], v6, s[16:19], s26 offen
    buffer_load_dwordx2 v[42:43], v6, s[16:19], s27 offen
    buffer_load_dwordx4 v[44:47], v7, s[20:23], s28 offen
    """)
    for sl in range(8):
        e(f"s_waitcnt vmcnt({10-sl})")
        for d in range(4):
            w = 8 + 4*sl + d
            if sl == 0:
                e(f"v_lshlrev_b32 v{48+2*d}, 16, v{w}")
                e(f"v_and_b32 v{49+2*d}, 0xffff0000, v{w}")
            else:
                e(f"v_lshlrev_b32 v56, 16, v{w}")
                e(f"v_and_b32 v57, 0xffff0000, v{w}")
                e(f"v_add_f32 v{48+2*d}, v{48+2*d}, v56")
                e(f"v_add_f32 v{49+2*d}, v{49+2*d}, v57")
    e("s_waitcnt vmcnt(0)")
    for i in range(4): e(f"v_cvt_pk_bf16_f32 v{8+i}, v{48+2*i}, v{49+2*i}")
    for i in range(4):
        e(f"v_lshlrev_b32 v{48+2*i}, 16, v{8+i}")
        e(f"v_and_b32 v{49+2*i}, 0xffff0000, v{8+i}")
    for i in range(8): e(f"v_mul_f32 v{48+i}, v{48+i}, v{44+i%4}")
    for i in range(4): e(f"v_cvt_pk_bf16_f32 v{8+i}, v{48+2*i}, v{49+2*i}")
    for i in range(4):
        e(f"v_lshlrev_b32 v{48+2*i}, 16, v{8+i}")
        e(f"v_and_b32 v{49+2*i}, 0xffff0000, v{8+i}")
        e(f"v_lshlrev_b32 v{16+2*i}, 16, v{40+i}")
        e(f"v_and_b32 v{17+2*i}, 0xffff0000, v{40+i}")
    for i in range(8): e(f"v_add_f32 v{48+i}, v{48+i}, v{16+i}")
    for i in range(4): e(f"v_cvt_pk_bf16_f32 v{8+i}, v{48+2*i}, v{49+2*i}")
    e("""
    buffer_store_dwordx2 v[8:9], v6, s[32:35], s26 offen
    buffer_store_dwordx2 v[10:11], v6, s[32:35], s27 offen
    L_k5_end:
    s_endpgm
    """)
    return k
```

```python
T=2048; D=576; H=32; DH=18; F=4608
WS_MOD=0x0; WS_CBT=0x4000; WS_KNORM=0x5000; WS_STATS=0x30000
WS_WQKV=0x100000; WS_WO=0x200000; WS_W1F=0x400000; WS_W2F=0xA00000
WS_N1=0x1000000; WS_Q=0x1300000; WS_KV=0x1600000; WS_O=0x1700000
WS_X2=0x1A00000; WS_YF=0x1D00000; WS_PART=0x2000000
ACT_BYTES=T*D*2
KVBLK=2368
KV_BYTES=148*1024
WS_UT=0x8000
```

```python
import sys
sys.path.insert(0, "gen")
from asmlib import *
from k0 import gen_k0
ks = [gen_k0()]
try:
    from k1 import gen_k1; ks.append(gen_k1())
    from k2 import gen_k2; ks.append(gen_k2())
    from k3 import gen_k3; ks.append(gen_k3())
    from k4 import gen_k4; ks.append(gen_k4())
    from k5 import gen_k5; ks.append(gen_k5())
except ImportError as ex:
    print("partial build:", ex)
out = sys.argv[1] if len(sys.argv) > 1 else "adaLN_cond__grouped_kv_mqa__dense_activation_relu__prompt.s"
emit_file(ks, out)
print("wrote", out, [k.name for k in ks])
```

```python
import struct

def f32bits(x):
    return struct.unpack("<I", struct.pack("<f", x))[0]

class Kernel:
    def __init__(self, name, grid, block, lds=0, vgpr=128, sgpr=96):
        self.name = name; self.grid = grid; self.block = block; self.lds = lds
        self.vgpr = vgpr; self.sgpr = sgpr
        self.lines = []
        self._lab = 0
    def e(self, s):
        for l in s.strip("\n").split("\n"):
            l = l.strip()
            if not l: continue
            if l.endswith(":"):
                self.lines.append(l)
            else:
                self.lines.append("    " + l)
    def label(self, base):
        self._lab += 1
        return f"L_{self.name}_{base}_{self._lab}"
    def srd(self, d, base, off, size):
        if off:
            self.e(f"s_add_u32 s{d}, s{base}, {off}")
            self.e(f"s_addc_u32 s{d+1}, s{base+1}, 0")
        else:
            self.e(f"s_mov_b32 s{d}, s{base}")
            self.e(f"s_mov_b32 s{d+1}, s{base+1}")
        self.e(f"s_mov_b32 s{d+2}, {size}")
        self.e(f"s_mov_b32 s{d+3}, 0x20000")
    def stamp(self, i):
        if not getattr(self, "stamps", False): return
        self.e(f"s_memtime s[{70+2*i}:{71+2*i}]")
        if i == 0: self.e("s_memrealtime s[96:97]")
        self.e("s_waitcnt lgkmcnt(0)")
    def stamp_dump(self, n, wave_sgpr, wg):
        if not getattr(self, "stamps", False): return
        lab = self.label("nostamp")
        self.e(f"""
        s_mov_b64 exec, -1
        s_cmp_lg_u32 s2, {wg}
        s_cbranch_scc1 {lab}
        s_cmp_ge_u32 s{wave_sgpr}, 8
        s_cbranch_scc1 {lab}
        s_load_dwordx2 s[88:89], s[0:1], 88
        s_memrealtime s[98:99]
        s_waitcnt lgkmcnt(0)
        s_mov_b32 s92, s88
        s_mov_b32 s93, s89
        s_mov_b32 s94, 256
        s_mov_b32 s95, 0x20000
        s_lshl_b32 s90, s{wave_sgpr}, 5
        v_mov_b32 v1, 0
        """)
        for i in range(n):
            self.e(f"s_sub_u32 s91, s{70+2*i}, s70")
            self.e(f"v_mov_b32 v2, s91")
            self.e(f"buffer_store_dword v2, v1, s[92:95], s90 offen offset:{4*i}")
        self.e(f"s_sub_u32 s91, s98, s96")
        self.e(f"v_mov_b32 v2, s91")
        self.e(f"buffer_store_dword v2, v1, s[92:95], s90 offen offset:28")
        self.e(f"{lab}:")
    def text(self):
        h = f".globl {self.name}\n.p2align 8\n.type {self.name},@function\n{self.name}:\n"
        return h + "\n".join(self.lines) + "\n"
    def desc(self):
        acc = (self.vgpr + 3) // 4 * 4
        return f""".p2align 6
.amdhsa_kernel {self.name}
  .amdhsa_next_free_vgpr {self.vgpr}
  .amdhsa_next_free_sgpr {self.sgpr}
  .amdhsa_accum_offset {acc}
  .amdhsa_group_segment_fixed_size 0
  .amdhsa_kernarg_size 104
  .amdhsa_user_sgpr_count 2
  .amdhsa_user_sgpr_kernarg_segment_ptr 1
  .amdhsa_system_sgpr_workgroup_id_x 1
.end_amdhsa_kernel
"""
    def launch_line(self):
        return f"; @launch kernel={self.name} grid=({self.grid},1,1) block=({self.block},1,1) lds={self.lds}\n"

HEADER = """; Kernarg layout for this problem (104 bytes, ptrs only, base s[0:1]):
"""

def emit_file(kernels, path):
    out = HEADER
    for k in kernels: out += k.launch_line()
    out += '.amdgcn_target "amdgcn-amd-amdhsa--gfx950"\n.text\n'
    for k in kernels: out += k.text()
    out += '.section .rodata,"a"\n'
    for k in kernels: out += k.desc()
    open(path, "w").write(out)


class VM:
    def __init__(self, k): self.k = k; self.ops = []
    def issue(self, text, tag):
        self.k.e(text); self.ops.append(tag)
    def count_after(self, tag):
        idx = max(i for i, t in enumerate(self.ops) if t == tag)
        return len(self.ops) - 1 - idx
    def wait_str(self, tag):
        n = self.count_after(tag)
        assert n <= 63
        return f"vmcnt({n})"
    def wait(self, tag):
        self.k.e(f"s_waitcnt {self.wait_str(tag)}")
```

```python
from asmlib import *
from layout import *
import math

QA1, QA2, QB1, QB2 = 8, 12, 14, 18
KB = [(20, 24), (26, 30)]
VB = [32, 40]
SA, SB, PA, PB, OA, OB = 48, 64, 80, 88, 96, 112
AK1, AK2, AV = 5, 6, 7
NIT = 16
STRIDE = 4 * KVBLK
SEG = 6
QSH = 64 * KVBLK

def gen_k2(stamps=False):
    k = Kernel("k2_kernel", grid=256, block=1024, lds=163840, vgpr=128, sgpr=100)
    k.stamps = stamps
    e = k.e
    T0 = SA
    k.stamp(0)
    e(f"""
    s_cmp_ge_u32 s2, 256
    s_cbranch_scc1 L_k2_end
    s_load_dwordx2 s[4:5], s[0:1], 96
    s_load_dwordx4 s[24:27], s[0:1], 48
    s_load_dwordx2 s[28:29], s[0:1], 32
    v_lshrrev_b32 v1, 6, v0
    v_and_b32 v2, 63, v0
    v_readfirstlane_b32 s6, v1
    v_and_b32 v3, 31, v2
    v_lshrrev_b32 v4, 5, v2
    v_lshlrev_b32 v1, 4, v2
    v_mul_u32_u24 v{T0}, 36, v3
    v_lshl_add_u32 v{T0+1}, v4, 4, v{T0}
    v_lshlrev_b32 v{T0+2}, 3, v2
    s_and_b32 s7, s6, 3
    s_lshr_b32 s8, s6, 2
    s_lshl_b32 s9, s2, 3
    s_lshl_b32 s10, s7, 1
    s_add_u32 s9, s9, s10
    s_mul_i32 s10, s9, 1152
    s_lshl_b32 s11, s6, 10
    s_waitcnt lgkmcnt(0)
    """)
    k.srd(12, 4, WS_Q, ACT_BYTES)
    k.srd(16, 4, WS_KV, KV_BYTES)
    k.srd(20, 4, WS_KNORM, 512)
    KN0, KN1 = T0+4, T0+5
    t0, t1, nA, nB = T0+6, T0+7, T0+8, T0+9
    e(f"""
    s_cmp_ge_u32 s8, 1
    s_cbranch_scc1 L_k2_noq
    buffer_load_dwordx2 v[{T0+4}:{T0+5}], v{T0+2}, s[20:23], 0 offen
    buffer_load_dwordx4 v[{QA1}:{QA1+3}], v{T0+1}, s[12:15], s10 offen
    buffer_load_dword v{QA2}, v{T0}, s[12:15], s10 offen offset:32
    buffer_load_dwordx4 v[{QB1}:{QB1+3}], v{T0+1}, s[12:15], s10 offen offset:1152
    buffer_load_dword v{QB2}, v{T0}, s[12:15], s10 offen offset:1184
    L_k2_noq:
    s_cmp_lg_u32 s8, 1
    s_cbranch_scc1 L_k2_nodma0
    s_lshl_b32 s11, s7, 10
    """)
    for r in range(10):
        e("s_mov_b32 m0, s11")
        e("s_nop 0")
        e("buffer_load_dwordx4 v1, s[16:19], s11 offen lds")
        if r < 9: e("s_add_u32 s11, s11, 4096")
    e("L_k2_nodma0:")
    e(f"""
    s_mul_i32 s11, s8, {KVBLK}
    v_add_u32 v{AK1}, s11, v1
    v_lshlrev_b32 v{AK2}, 2, v3
    s_add_u32 s30, s11, 1024
    v_add_u32 v{AK2}, s30, v{AK2}
    v_mov_b32 v{AV}, 4
    v_subrev_u32 v{t0}, 20, v3
    v_cmp_gt_u32 vcc, 8, v{t0}
    s_nop 1
    v_cndmask_b32 v{AV}, v{AV}, 0, vcc
    v_cmp_gt_u32 vcc, 19, v3
    s_nop 1
    v_cndmask_b32 v{AV}, v{AV}, v3, vcc
    v_lshlrev_b32 v{AV}, 4, v{AV}
    v_mul_u32_u24 v{t0}, 304, v4
    s_add_u32 s30, s11, 1152
    v_add3_u32 v{AV}, v{AV}, v{t0}, s30
    v_mov_b32 v{KB[0][1]+1}, 0x3f803f80
    v_mov_b32 v{KB[1][1]+1}, 0x3f803f80
    s_mul_i32 s30, s7, 3072
    s_add_u32 s30, s30, {QSH}
    v_add_u32 v{PB+7}, s30, v1
    s_cmp_ge_u32 s8, 1
    s_cbranch_scc1 L_k2_qdone
    s_waitcnt vmcnt(4)
    """)
    k.stamp(1)
    for rot in (1, 2, 4, 8):
        e(f"v_max_f32_dpp v{KN0}, v{KN0}, v{KN0} row_ror:{rot} row_mask:0xf bank_mask:0xf")
        e(f"v_max_f32_dpp v{KN1}, v{KN1}, v{KN1} row_ror:{rot} row_mask:0xf bank_mask:0xf")
        e("s_nop 0")
    for op in ("v_permlane16_swap_b32", "v_permlane32_swap_b32"):
        e(f"""
        v_mov_b32 v{t0}, v{KN0}
        v_mov_b32 v{t1}, v{KN1}
        s_nop 1
        {op} v{KN0}, v{t0}
        {op} v{KN1}, v{t1}
        s_nop 1
        v_max_f32 v{KN0}, v{KN0}, v{t0}
        v_max_f32 v{KN1}, v{KN1}, v{t1}
        """)
    e(f"v_add_f32 v{KN0}, v{KN0}, v{KN1}")
    e("s_waitcnt vmcnt(0)")
    e(f"""
    v_cmp_eq_u32 vcc, 0, v4
    s_nop 1
    v_cndmask_b32 v{QA2}, 0, v{QA2}, vcc
    v_cndmask_b32 v{QB2}, 0, v{QB2}, vcc
    """)
    for (q1, q2, n) in ((QA1, QA2, nA), (QB1, QB2, nB)):
        e(f"v_mov_b32 v{n}, 0")
        for r in [q1, q1+1, q1+2, q1+3, q2]:
            e(f"v_lshlrev_b32 v{t0}, 16, v{r}")
            e(f"v_and_b32 v{t1}, 0xffff0000, v{r}")
            e(f"v_fmac_f32 v{n}, v{t0}, v{t0}")
            e(f"v_fmac_f32 v{n}, v{t1}, v{t1}")
    e(f"""
    v_mov_b32 v{t0}, v{nA}
    v_mov_b32 v{t1}, v{nB}
    s_nop 1
    v_permlane32_swap_b32 v{nA}, v{t0}
    v_permlane32_swap_b32 v{nB}, v{t1}
    s_nop 1
    v_add_f32 v{nA}, v{nA}, v{t0}
    v_add_f32 v{nB}, v{nB}, v{t1}
    v_mul_f32 v{nA}, v{nA}, v{KN0}
    v_mul_f32 v{nB}, v{nB}, v{KN0}
    v_sqrt_f32 v{PA}, v{nA}
    v_sqrt_f32 v{PA+1}, v{nB}
    s_nop 0
    v_max_f32 v{t0}, v{PA}, v{PA+1}
    v_mov_b32 v{t1}, 0x42700000
    v_cmp_nle_f32 vcc, v{t0}, v{t1}
    s_cbranch_vccnz L_k2_fallback
    L_k2_shift:
    """)
    for (q2, n) in ((QA2, PA), (QB2, PA+1)):
        e(f"""
        v_sub_f32 v{n}, 0, v{n}
        v_cvt_pk_bf16_f32 v{PA+2}, v{n}, v{n}
        v_lshlrev_b32 v{PA+2}, 16, v{PA+2}
        v_sub_f32 v{n}, v{n}, v{PA+2}
        v_cvt_pk_bf16_f32 v{PA+3}, v{n}, v{n}
        v_lshlrev_b32 v{PA+3}, 16, v{PA+3}
        v_sub_f32 v{n}, v{n}, v{PA+3}
        v_cvt_pk_bf16_f32 v{PA+2}, v{PA+2}, v{PA+3}
        v_cvt_pk_bf16_f32 v{PA+3}, v{n}, 0
        v_cmp_eq_u32 vcc, 0, v4
        s_nop 1
        v_cndmask_b32 v{q2+1}, v{PA+3}, v{PA+2}, vcc
        """)
    def off(i): return (i % SEG) * STRIDE
    def rdK(i):
        k1, k2 = KB[i % 2]
        return [f"ds_read_b128 v[{k1}:{k1+3}], v{AK1} offset:{off(i)}", f"ds_read_b32 v{k2}, v{AK2} offset:{off(i)}"]
    def rdV(i):
        v = VB[i % 2]
        return [f"ds_read_b128 v[{v}:{v+3}], v{AV} offset:{off(i)}", f"ds_read_b128 v[{v+4}:{v+7}], v{AV} offset:{off(i)+608}"]
    def bumpK(): return [f"v_add_u32 v{AK1}, {SEG*STRIDE}, v{AK1}", f"v_add_u32 v{AK2}, {SEG*STRIDE}, v{AK2}"]
    def bumpV(): return [f"v_add_u32 v{AV}, {SEG*STRIDE}, v{AV}"]
    def QK(S, q1, q2, i):
        k1, k2 = KB[i % 2]
        return [f"v_mfma_f32_32x32x8_bf16 v[{S}:{S+15}], v[{k2}:{k2+1}], v[{q2}:{q2+1}], 0",
                f"v_mfma_f32_32x32x16_bf16 v[{S}:{S+15}], v[{k1}:{k1+3}], v[{q1}:{q1+3}], v[{S}:{S+15}]"]
    def PV(O, P, i):
        v = VB[i % 2]
        return [f"v_mfma_f32_32x32x16_bf16 v[{O}:{O+15}], v[{v}:{v+3}], v[{P}:{P+3}], v[{O}:{O+15}]",
                f"v_mfma_f32_32x32x16_bf16 v[{O}:{O+15}], v[{v+4}:{v+7}], v[{P+4}:{P+7}], v[{O}:{O+15}]"]
    def phase(mf, S, P, extra=()):
        extra = list(extra)
        mf = list(mf) + [None] * (4 - len(mf))
        for gidx in range(4):
            if mf[gidx]: e(mf[gidx])
            elif gidx > 0: e("s_nop 0")
            if gidx > 0:
                for c in range(2):
                    a = 4*(gidx-1) + 2*c
                    e(f"v_cvt_pk_bf16_f32 v{P + a//2}, v{S+a}, v{S+a+1}")
            if gidx < 3:
                for x in range(4):
                    e(f"v_exp_f32 v{S+4*gidx+x}, v{S+4*gidx+x}")
                n = (len(extra) + (2 - gidx)) // (3 - gidx)
                for _ in range(n): e(extra.pop(0))
            else:
                e(f"v_exp_f32 v{S+12}, v{S+12}")
                e(f"v_exp_f32 v{S+13}, v{S+13}")
                e(f"v_exp_f32 v{S+14}, v{S+14}")
                e(f"v_exp_f32 v{S+15}, v{S+15}")
                e(f"v_cvt_pk_bf16_f32 v{P+6}, v{S+12}, v{S+13}")
                e(f"v_cvt_pk_bf16_f32 v{P+7}, v{S+14}, v{S+15}")
    e(f"""
    ds_write_b128 v{PB+7}, v[8:11]
    ds_write_b128 v{PB+7}, v[12:15] offset:1024
    ds_write_b128 v{PB+7}, v[16:19] offset:2048
    L_k2_qdone:
    """)
    for i in range(16):
        e(f"v_mov_b32 v{OA+i}, 0")
        e(f"v_mov_b32 v{OB+i}, 0")
    e(f"""
    s_waitcnt vmcnt(0) lgkmcnt(0)
    s_barrier
    """)
    k.stamp(2)
    for x in rdK(0) + rdV(0): e(x)
    e(f"""
    ds_read_b128 v[8:11], v{PB+7}
    ds_read_b128 v[12:15], v{PB+7} offset:1024
    ds_read_b128 v[16:19], v{PB+7} offset:2048
    s_cmp_lt_u32 s6, 8
    s_cbranch_scc1 L_k2_nodma1
    s_add_u32 s11, s6, 32
    s_lshl_b32 s11, s11, 10
    """)
    for r in range(14):
        if r == 13: e(f"s_min_u32 s11, s11, {147*1024}")
        e("s_mov_b32 m0, s11")
        e("s_nop 0")
        e("buffer_load_dwordx4 v1, s[16:19], s11 offen lds")
        if r < 13: e("s_add_u32 s11, s11, 8192")
    e("L_k2_nodma1:")
    e("s_waitcnt lgkmcnt(0)")
    for x in QK(SA, QA1, QA2, 0): e(x)
    e("s_nop 7\ns_nop 3")
    for i in range(NIT):
        if i == 3: e("s_waitcnt vmcnt(0)\ns_barrier")
        if i == 8: e("s_waitcnt lgkmcnt(0)\ns_barrier")
        ex1 = []
        if i + 1 < NIT:
            if (i + 1) % SEG == 0: ex1 += bumpK()
            ex1 += rdK(i + 1)
        mf = QK(SB, QB1, QB2, i) + (PV(OB, PB, i-1) if i > 0 else [])
        phase(mf, SA, PA, ex1)
        e("s_waitcnt lgkmcnt(0)")
        exv = []
        if i + 1 < NIT:
            if (i + 1) % SEG == 0: exv += bumpV()
            exv += rdV(i + 1)
        mf = (QK(SA, QA1, QA2, i+1) if i + 1 < NIT else [None, None]) + PV(OA, PA, i)
        phase(mf, SB, PB, exv)
    e("s_nop 1")
    for x in PV(OB, PB, NIT-1): e(x)
    k.stamp(3)
    def slotbase(dst, wreg):
        e(f"s_mul_i32 s{dst}, s{wreg}, 5120")
    e("""
    s_cmp_eq_u32 s8, 3
    s_cbranch_scc1 L_k2_side_done
    """)
    slotbase(11, 6)
    e(f"""
    v_add_u32 v{AK1}, s11, v1
    s_nop 7
    ds_write_b128 v{AK1}, v[{OA}:{OA+3}]
    ds_write_b128 v{AK1}, v[{OA+4}:{OA+7}] offset:1024
    ds_write_b128 v{AK1}, v[{OB}:{OB+3}] offset:2560
    ds_write_b128 v{AK1}, v[{OB+4}:{OB+7}] offset:3584
    s_mov_b32 exec_hi, 0
    ds_write_b128 v{AK1}, v[{OA+8}:{OA+11}] offset:2048
    ds_write_b128 v{AK1}, v[{OB+8}:{OB+11}] offset:4608
    s_mov_b64 exec, -1
    """)
    LD = 8
    k.srd(32, 4, 0, WS_N1)
    e(f"""
    s_cmp_ge_u32 s8, 2
    s_cbranch_scc1 L_k2_side_done
    v_and_b32 v84, 15, v2
    v_lshrrev_b32 v85, 4, v2
    s_cmp_eq_u32 s8, 1
    s_cbranch_scc1 L_k2_side_w2
    s_cmp_ge_u32 s2, 216
    s_cbranch_scc1 L_k2_side_done
    s_mul_i32 s36, s2, 21846
    s_lshr_b32 s36, s36, 16
    s_mul_i32 s37, s36, 3
    s_sub_u32 s37, s2, s37
    s_lshl_b32 s36, s36, 2
    s_add_u32 s36, s36, s7
    s_mul_i32 s38, s37, 6
    s_mov_b32 s40, s24
    s_mov_b32 s41, s25
    s_mov_b32 s42, 5308416
    s_mov_b32 s43, 0x20000
    v_mul_u32_u24 v86, 36864, v85
    v_lshl_add_u32 v86, v84, 1, v86
    s_mul_i32 s44, s38, {32*9216}
    s_lshl_b32 s45, s36, 5
    s_add_u32 s44, s44, s45
    v_and_b32 v87, 1, v84
    v_lshlrev_b32 v87, 6, v87
    v_lshl_add_u32 v87, v85, 4, v87
    s_lshl_b32 s45, s38, 7
    s_add_u32 s45, s45, {WS_CBT}
    """)
    for c in range(6):
        for j in range(8):
            e(f"buffer_load_ushort v{LD+8*c+j}, v86, s[40:43], s44 offen")
            e(f"s_add_u32 s44, s44, {9216*13 if j in (3, 7) else 9216}")
    for c in range(6):
        e(f"buffer_load_dwordx4 v[{56+4*c}:{59+4*c}], v87, s[32:35], s45 offen offset:{128*c}")
    e(f"""
    s_mul_i32 s46, s36, 18
    s_add_u32 s46, s46, s38
    s_lshl_b32 s46, s46, 10
    s_add_u32 s46, s46, {WS_W1F}
    s_waitcnt vmcnt(0)
    """)
    for c in range(6):
        b = LD + 8*c
        for x in range(4): e(f"v_lshl_or_b32 v{b+x}, v{b+2*x+1}, 16, v{b+2*x}")
        if c == 4: e("s_add_u32 s46, s46, 4096")
        e(f"buffer_store_dwordx4 v[{b}:{b+3}], v1, s[32:35], s46 offen offset:{1024*(c%4)}")
        cc = "0" if c == 0 else "v[80:83]"
        e("s_nop 0")
        e(f"v_mfma_f32_16x16x32_bf16 v[80:83], v[{b}:{b+3}], v[{56+4*c}:{59+4*c}], {cc}")
    e(f"""
    v_mul_u32_u24 v86, 18432, v84
    v_lshl_add_u32 v86, v85, 4, v86
    s_mul_i32 s46, s37, 36864
    s_lshl_b32 s47, s36, 6
    s_add_u32 s46, s46, s47
    s_add_u32 s46, s46, {WS_UT}
    v_cmp_gt_u32 vcc, 2, v84
    s_and_saveexec_b64 s[30:31], vcc
    s_nop 3
    buffer_store_dwordx4 v[80:83], v86, s[32:35], s46 offen
    s_mov_b64 exec, s[30:31]
    s_branch L_k2_side_done
    L_k2_side_w2:
    s_cmp_ge_u32 s2, 243
    s_cbranch_scc1 L_k2_side_done
    s_cmp_ge_u32 s2, 216
    s_cbranch_scc1 L_k2_side_wo
    s_mul_i32 s36, s2, 7282
    s_lshr_b32 s36, s36, 16
    s_mul_i32 s37, s36, 9
    s_sub_u32 s37, s2, s37
    s_lshl_b32 s37, s37, 2
    s_add_u32 s37, s37, s7
    s_mov_b32 s40, s26
    s_mov_b32 s41, s27
    s_mov_b32 s42, 5308416
    v_mul_u32_u24 v86, 4608, v85
    s_mov_b32 s47, 18432
    s_mul_i32 s38, s36, 21846
    s_lshr_b32 s38, s38, 16
    s_mul_i32 s39, s38, 3
    s_sub_u32 s39, s36, s39
    s_mul_i32 s39, s39, 6
    s_mul_i32 s46, s38, 36
    s_add_u32 s46, s46, s37
    s_mul_i32 s46, s46, 18
    s_add_u32 s46, s46, s39
    s_lshl_b32 s46, s46, 10
    s_add_u32 s46, s46, {WS_W2F}
    s_branch L_k2_side_go
    L_k2_side_wo:
    s_sub_u32 s38, s2, 216
    s_mul_i32 s36, s38, 7282
    s_lshr_b32 s36, s36, 16
    s_mul_i32 s37, s36, 9
    s_sub_u32 s37, s38, s37
    s_lshl_b32 s37, s37, 2
    s_add_u32 s37, s37, s7
    s_mov_b32 s40, s28
    s_mov_b32 s41, s29
    s_mov_b32 s42, 663552
    v_mul_u32_u24 v86, 9216, v85
    s_mov_b32 s47, 4608
    s_mul_i32 s39, s36, 6
    s_mul_i32 s46, s37, 18
    s_add_u32 s46, s46, s39
    s_lshl_b32 s46, s46, 10
    s_add_u32 s46, s46, {WS_WO}
    L_k2_side_go:
    s_mov_b32 s43, 0x20000
    v_lshl_add_u32 v86, v84, 1, v86
    s_mul_i32 s44, s36, {6*32*1152}
    s_lshl_b32 s45, s37, 5
    s_add_u32 s44, s44, s45
    """)
    for c in range(6):
        e(f"s_add_u32 s45, s44, s47")
        for j in range(8):
            e(f"buffer_load_ushort v{LD+8*c+j}, v86, s[40:43], s{44 if j < 4 else 45} offen offset:{1152*(j%4)}")
        e(f"s_add_u32 s44, s44, {32*1152}")
    for c in range(6):
        b = LD + 8*c
        e(f"s_waitcnt vmcnt({8*(5-c) + c})")
        for x in range(4): e(f"v_lshl_or_b32 v{b+x}, v{b+2*x+1}, 16, v{b+2*x}")
        if c == 4: e("s_add_u32 s46, s46, 4096")
        e(f"buffer_store_dwordx4 v[{b}:{b+3}], v1, s[32:35], s46 offen offset:{1024*(c%4)}")
    e("L_k2_side_done:")
    k.stamp(4)
    e(f"""
    s_waitcnt lgkmcnt(0)
    s_barrier
    s_cmp_lg_u32 s8, 3
    s_cbranch_scc1 L_k2_fin
    """)
    for src in range(3):
        e(f"s_add_u32 s30, s7, {4*src}")
        slotbase(11, 30)
        e(f"v_add_u32 v{AK1}, s11, v1")
        for t in range(2):
            for c in range(3):
                r = 8 + 24*src + 12*t + 4*c
                e(f"ds_read_b128 v[{r}:{r+3}], v{AK1} offset:{2560*t + 1024*c}")
    k.srd(12, 4, WS_O, ACT_BYTES)
    e(f"""
    s_mul_i32 s10, s9, 1152
    v_mul_u32_u24 v{AV}, 36, v3
    v_lshl_add_u32 v{AK2}, v4, 3, v{AV}
    """)
    for src in range(3):
        e(f"s_waitcnt lgkmcnt({6*(2-src)})")
        for t, O in enumerate((OA, OB)):
            for i in range(11): e(f"v_add_f32 v{O+i}, v{O+i}, v{8 + 24*src + 12*t + i}")
    e(f"""
    v_mov_b32 v8, v{OA+10}
    v_mov_b32 v9, v{OB+10}
    s_nop 1
    v_permlane32_swap_b32 v{OA+10}, v8
    v_permlane32_swap_b32 v{OB+10}, v9
    s_nop 1
    v_rcp_f32 v8, v{OA+10}
    v_rcp_f32 v9, v{OB+10}
    s_nop 0
    """)
    for t, O in enumerate((OA, OB)):
        for i in range(10): e(f"v_mul_f32 v{O+i}, v{O+i}, v{8+t}")
        for i in range(5): e(f"v_cvt_pk_bf16_f32 v{PA+6*t+i}, v{O+2*i}, v{O+2*i+1}")
        e(f"buffer_store_dwordx2 v[{PA+6*t}:{PA+6*t+1}], v{AK2}, s[12:15], s10 offen offset:{1152*t}")
        e(f"buffer_store_dwordx2 v[{PA+6*t+2}:{PA+6*t+3}], v{AK2}, s[12:15], s10 offen offset:{1152*t+16}")
    e(f"""
    s_mov_b32 exec_hi, 0
    buffer_store_dword v{PA+4}, v{AV}, s[12:15], s10 offen offset:32
    buffer_store_dword v{PA+10}, v{AV}, s[12:15], s10 offen offset:1184
    L_k2_fin:
    """)
    if stamps:
        e("s_waitcnt vmcnt(0)")
        k.stamp(5)
        e("s_lshr_b32 s6, s6, 1")
        k.stamp_dump(6, 6, 100)
    e("L_k2_end:\ns_endpgm")
    e(f"""
    L_k2_fallback:
    v_mov_b32 v{QA2+1}, 0
    v_mov_b32 v{QB2+1}, 0
    v_mov_b32 v{PA}, 0xff7fffff
    v_mov_b32 v{PA+1}, 0xff7fffff
    v_lshlrev_b32 v{PA+2}, 2, v3
    v_mov_b32 v{PB+5}, 0
    s_mov_b32 s30, 0
    L_k2_fb_loop:
    buffer_load_dwordx4 v[{PB}:{PB+3}], v1, s[16:19], s30 offen
    buffer_load_dword v{PB+4}, v{PA+2}, s[16:19], s30 offen offset:1024
    s_waitcnt vmcnt(0)
    """)
    for (S, q1, q2) in ((SA, QA1, QA2), (SB, QB1, QB2)):
        e(f"v_mfma_f32_32x32x8_bf16 v[{S}:{S+15}], v[{PB+4}:{PB+5}], v[{q2}:{q2+1}], 0")
        e(f"v_mfma_f32_32x32x16_bf16 v[{S}:{S+15}], v[{PB}:{PB+3}], v[{q1}:{q1+3}], v[{S}:{S+15}]")
    e("s_nop 15")
    for i in range(0, 16, 2):
        e(f"v_max3_f32 v{PA}, v{PA}, v{SA+i}, v{SA+i+1}")
    for i in range(0, 16, 2):
        e(f"v_max3_f32 v{PA+1}, v{PA+1}, v{SB+i}, v{SB+i+1}")
    e(f"""
    s_add_u32 s30, s30, {KVBLK}
    s_cmp_lt_u32 s30, {64*KVBLK}
    s_cbranch_scc1 L_k2_fb_loop
    v_mov_b32 v{PA+2}, v{PA}
    v_mov_b32 v{PA+3}, v{PA+1}
    s_nop 1
    v_permlane32_swap_b32 v{PA}, v{PA+2}
    v_permlane32_swap_b32 v{PA+1}, v{PA+3}
    s_nop 1
    v_max_f32 v{PA}, v{PA}, v{PA+2}
    v_max_f32 v{PA+1}, v{PA+1}, v{PA+3}
    s_branch L_k2_shift
    """)
    return k
```

```python
from asmlib import *
from layout import *

YB = 0; HB = 77824; RSB = HB + 73728
LDS4 = RSB + 256

def gen_k4(stamps=False):
    k = Kernel("k4_kernel", grid=256, block=768, lds=LDS4, vgpr=168, sgpr=100)
    k.stamps = stamps
    e = k.e
    vm = VM(k)
    ACC = 8
    RD = 4
    AF = 56
    BF = 104
    AX = 136
    TL = 148
    k.stamp(0)
    e("""
    s_cmp_ge_u32 s2, 256
    s_cbranch_scc1 L_k4_end
    s_load_dwordx2 s[4:5], s[0:1], 96
    v_lshrrev_b32 v1, 6, v0
    v_and_b32 v2, 63, v0
    v_readfirstlane_b32 s6, v1
    s_and_b32 s7, s2, 7
    s_lshr_b32 s8, s2, 3
    v_and_b32 v3, 15, v2
    v_lshrrev_b32 v4, 4, v2
    v_lshlrev_b32 v5, 4, v2
    v_add_u32 v6, 18432, v5
    v_add_u32 v7, 36864, v5
    v_add_u32 v157, 65536, v5
    v_add_u32 v158, 131072, v5
    v_lshlrev_b32 v159, 5, v2
    v_cmp_eq_u32 s[36:37], 0, v4
    v_cmp_eq_u32 s[38:39], 1, v4
    s_mov_b32 s40, 0xffff
    s_mul_i32 s9, s8, 73728
    s_lshl_b32 s10, s6, 10
    s_add_u32 s9, s9, s10
    s_mul_i32 s28, s7, 36
    s_mul_i32 s30, s6, 3
    s_add_u32 s28, s28, s30
    s_lshl_b32 s41, s28, 6
    s_mul_i32 s28, s28, 18432
    s_mov_b32 s29, s28
    s_mul_i32 s34, s7, 663552
    s_mul_i32 s35, s8, 20736
    s_add_u32 s34, s34, s35
    s_mul_i32 s35, s6, 1728
    s_add_u32 s34, s34, s35
    s_waitcnt lgkmcnt(0)
    """)
    k.srd(12, 4, WS_YF, ACT_BYTES)
    k.srd(16, 4, WS_W1F, 288*18*1024)
    k.srd(20, 4, WS_W2F, 288*18*1024)
    k.srd(24, 4, 0, 0x40000)
    def dmaY(r):
        e("s_mov_b32 m0, s10")
        e("s_nop 0")
        vm.issue("buffer_load_dwordx4 v5, s[12:15], s9 offen lds", f"y{r}")
        e("s_add_u32 s10, s10, 12288")
        e("s_add_u32 s9, s9, 12288")
    def ldA(ph, s):
        srd, so = (16, 28) if ph == 1 else (20, 29)
        if s and s % 4 == 0: e(f"s_add_u32 s{so}, s{so}, 4096")
        g = (s + (18 if ph == 2 else 0)) % RD
        for i in range(3):
            r = AF + 12*g + 4*i
            vm.issue(f"buffer_load_dwordx4 v[{r}:{r+3}], v{5+i}, s[{srd}:{srd+3}], s{so} offen offset:{1024*(s%4)}", f"A{ph}_{s}")
    dmaY(0)
    vm.issue("buffer_load_dword v161, v159, s[16:19], s34 offen", "wu")
    e("s_barrier")
    ldA(1, 0); ldA(1, 1); dmaY(1); ldA(1, 2); ldA(1, 3)
    def rdB(phase, s):
        b = BF + 16*(s % 2)
        base = YB if phase == 1 else HB
        for nt in range(4):
            off = base + (s*4 + nt)*1024
            areg, o = (5, off) if off < 65536 else ((157, off - 65536) if off < 131072 else (158, off - 131072))
            e(f"ds_read_b128 v[{b+4*nt}:{b+4*nt+3}], v{areg} offset:{o}")
    def mfmas(ph, s):
        b = BF + 16*(s % 2)
        g = (s + (18 if ph == 2 else 0)) % RD
        for i in range(3):
            a = (AF + 12*g + 4*i) if s < 18 else (AX + 4*i)
            for nt in range(4):
                c = ACC + 16*i + 4*nt
                cc = "0" if s == 0 else f"v[{c}:{c+3}]"
                e(f"v_mfma_f32_16x16x32_bf16 v[{c}:{c+3}], v[{a}:{a+3}], v[{b+4*nt}:{b+4*nt+3}], {cc}")
    def split3(x, p1, p2, p3, t):
        e(f"""
        v_cvt_pk_bf16_f32 v{p1}, v{x}, v{x}
        v_lshlrev_b32 v{t}, 16, v{p1}
        v_sub_f32 v{x}, v{x}, v{t}
        v_cvt_pk_bf16_f32 v{p2}, v{x}, v{x}
        v_lshlrev_b32 v{t}, 16, v{p2}
        v_sub_f32 v{x}, v{x}, v{t}
        v_cvt_pk_bf16_f32 v{p3}, v{x}, v{x}
        """)
    def pair(d, lo, hi): e(f"v_bfi_b32 v{d}, s40, v{lo}, v{hi}")
    def select(d, a, b):
        for i in range(2):
            e(f"v_cndmask_b32 v{d+i}, 0, v{b[i]}, s[38:39]")
            e(f"v_cndmask_b32 v{d+i}, v{d+i}, v{a[i]}, s[36:37]")
        for i in range(2, 4):
            e(f"v_cndmask_b32 v{d+i}, 0, v{a[i]}, s[36:37]")
    def stats_load():
        e(f"""
        s_and_b32 s31, s6, 3
        s_lshl_b32 s32, s8, 11
        s_lshl_b32 s33, s31, 9
        s_add_u32 s32, s32, s33
        s_add_u32 s32, s32, {WS_STATS}
        v_lshlrev_b32 v163, 5, v3
        """)
        vm.issue(f"buffer_load_dwordx4 v[{TL}:{TL+3}], v163, s[24:27], s32 offen", "st")
        vm.issue(f"buffer_load_dwordx4 v[{TL+4}:{TL+7}], v163, s[24:27], s32 offen offset:16", "st")
    def stats_proc():
        b = TL
        vm.wait("st")
        e(f"""
        v_add_f32 v164, v{b}, v{b+2}
        v_add_f32 v165, v{b+4}, v{b+6}
        v_add_f32 v164, v164, v165
        v_mul_f32 v164, 0.25, v164
        v_add_f32 v165, v{b+1}, v{b+3}
        v_add_f32 v166, v{b+5}, v{b+7}
        v_add_f32 v165, v165, v166
        v_sub_f32 v{b}, v{b}, v164
        v_sub_f32 v{b+2}, v{b+2}, v164
        v_sub_f32 v{b+4}, v{b+4}, v164
        v_sub_f32 v{b+6}, v{b+6}, v164
        v_mul_f32 v166, v{b}, v{b}
        v_fmac_f32 v166, v{b+2}, v{b+2}
        v_fmac_f32 v166, v{b+4}, v{b+4}
        v_fmac_f32 v166, v{b+6}, v{b+6}
        v_fmac_f32 v165, 0x43100000, v166
        v_mov_b32 v166, {hex(f32bits(1e-5))}
        v_fmac_f32 v166, {hex(f32bits(1.0/576))}, v165
        v_rsq_f32 v165, v166
        v_sqrt_f32 v166, v166
        v_sub_f32 v164, 0, v164
        s_lshl_b32 s32, s31, 6
        s_add_u32 s32, s32, {RSB}
        v_lshlrev_b32 v163, 2, v3
        v_add_u32 v163, s32, v163
        ds_write_b32 v163, v165
        """)
        m1, m2, m3, s1, s2, s3 = TL, TL+1, TL+2, TL+3, TL+4, TL+5
        split3(164, m1, m2, m3, 167)
        split3(166, s1, s2, s3, 167)
        a = [AX+4, AX+5, AX+6, AX+7]; bb = [AX+8, AX+9]
        pair(a[0], m1, m2); pair(a[1], m1, m3); pair(a[2], m2, m1); pair(a[3], s1, s2)
        pair(bb[0], s1, s3); pair(bb[1], s2, s1)
        select(AX, a, bb)
        e(f"""
        s_lshl_b32 s32, s31, 10
        s_add_u32 s32, s32, {YB + 18*4096}
        v_add_u32 v163, s32, v5
        ds_write_b128 v163, v[{AX}:{AX+3}]
        """)
    def ut_load(i):
        e("v_lshlrev_b32 v163, 2, v3")
        e(f"s_add_u32 s32, s41, {WS_UT}")
        for row in range(6):
            vm.issue(f"buffer_load_dword v{TL+row}, v163, s[24:27], s32 offen offset:{64*i}", f"ut{i}")
            if row < 5: e("s_add_u32 s32, s32, 18432")
    def ut_proc(i):
        vm.wait(f"ut{i}")
        e(f"""
        v_add_f32 v164, v{TL}, v{TL+2}
        v_add_f32 v166, v{TL+1}, v{TL+3}
        v_add_f32 v164, v164, v{TL+4}
        v_add_f32 v166, v166, v{TL+5}
        """)
        u1, u2, u3, t1, t2, t3 = TL, TL+1, TL+2, TL+3, TL+4, TL+5
        split3(164, u1, u2, u3, 167)
        split3(166, t1, t2, t3, 167)
        pair(164, u2, u1); pair(165, u2, u3); pair(166, t2, t1); pair(167, t2, t3)
        select(AX + 4*i, [u1, 164, 165, t1], [166, 167])
    k.stamp(1)
    vm.wait("y0")
    e("s_barrier")
    k.stamp(2)
    rdB(1, 0)
    for s in range(19):
        if s == 6: k.stamp(3)
        if s == 12: k.stamp(4)
        wa = vm.wait_str(f'A1_{s}') + " " if s < 18 else ""
        if s + 1 < 19:
            if (s + 1) % 3 == 0 and s + 1 < 18:
                vm.wait(f"y{(s+1)//3}")
                e("s_barrier")
            rdB(1, s+1)
            e(f"s_waitcnt {wa}lgkmcnt(4)")
        else:
            e(f"s_waitcnt lgkmcnt(0)")
        mfmas(1, s)
        if s < 18:
            if s + RD < 18: ldA(1, s + RD)
            else: ldA(2, s + RD - 18)
        if s % 3 == 0 and s // 3 + 2 < 6: dmaY(s // 3 + 2)
        if s == 1: stats_load()
        if s == 4:
            stats_proc(); ut_load(0)
            vm.issue("buffer_load_dword v162, v159, s[20:23], s34 offen", "wu2")
        if s == 8: ut_proc(0); ut_load(1)
        if s == 12: ut_proc(1); ut_load(2)
        if s == 16: ut_proc(2)
    k.stamp(5)
    for i in range(3):
        e(f"""
        s_add_u32 s31, s30, {i}
        s_lshr_b32 s32, s31, 1
        s_lshl_b32 s32, s32, 12
        s_and_b32 s31, s31, 1
        s_lshl_b32 s31, s31, 3
        s_add_u32 s32, s32, s31
        s_add_u32 s32, s32, {HB}
        v_add_u32 v160, s32, v5
        """)
        for nt in range(4):
            c = ACC + 16*i + 4*nt
            e(f"v_cvt_pk_bf16_f32 v{c}, v{c}, v{c+1}")
            e(f"v_cvt_pk_bf16_f32 v{c+1}, v{c+2}, v{c+3}")
            e(f"v_pk_max_i16 v{c}, v{c}, 0")
            e(f"v_pk_max_i16 v{c+1}, v{c+1}, 0")
            e(f"ds_write_b64 v160, v[{c}:{c+1}] offset:{1024*nt}")
    e(f"v_lshlrev_b32 v163, 2, v3\nv_add_u32 v163, {RSB}, v163")
    for nt in range(4): e(f"ds_read_b32 v{AX+nt}, v163 offset:{64*nt}")
    e("s_waitcnt lgkmcnt(0)\ns_barrier")
    rdB(2, 0)
    for s in range(18):
        if s + 1 < 18:
            if (s + 1) % 3 == 0: e("s_barrier")
            rdB(2, s+1)
            e(f"s_waitcnt {vm.wait_str(f'A2_{s}')} lgkmcnt(4)")
        else:
            e(f"s_waitcnt {vm.wait_str(f'A2_{s}')} lgkmcnt(0)")
        mfmas(2, s)
        if s + RD < 18: ldA(2, s + RD)
    k.stamp(6)
    k.srd(12, 4, WS_PART, 8*ACT_BYTES)
    e("""
    s_lshl_b32 s9, s7, 5
    s_add_u32 s9, s9, s8
    s_mul_i32 s9, s9, 36
    s_add_u32 s9, s9, s30
    s_lshl_b32 s9, s9, 11
    s_add_u32 s10, s9, 4096
    s_nop 3
    """)
    for i in range(3):
        for np_ in range(2):
            c = ACC + 16*i + 8*np_
            o = BF + 8*i + 4*np_
            for q in range(8):
                e(f"v_mul_f32 v{c+q}, v{c+q}, v{AX + 2*np_ + q//4}")
            for q in range(4):
                e(f"v_cvt_pk_bf16_f32 v{o+q}, v{c+2*q}, v{c+2*q+1}")
            if i == 2:
                e(f"buffer_store_dwordx4 v[{o}:{o+3}], v5, s[12:15], s10 offen offset:{1024*np_}")
            else:
                e(f"buffer_store_dwordx4 v[{o}:{o+3}], v5, s[12:15], s9 offen offset:{2048*i + 1024*np_}")
    if stamps:
        e("s_lshr_b32 s6, s6, 1")
        k.stamp_dump(7, 6, 100)
    e("L_k4_end:\ns_endpgm")
    return k
```

```python
import sys
sys.path.insert(0, "gen")
from asmlib import *
from k0 import gen_k0
from k1 import gen_k1
from k2 import gen_k2
from k3 import gen_k3
from k4 import gen_k4
from k5 import gen_k5
emit_file([gen_k0(), gen_k1(stamps=True), gen_k2(stamps=True), gen_k3(stamps=True), gen_k4(stamps=True), gen_k5()], "dbg.s")
```

```python
import sys
sys.path.insert(0, "gen")
from asmlib import *
from k0 import gen_k0
from k1 import gen_k1
from k2 import gen_k2
from k3 import gen_k3
from k4 import gen_k4
from k5 import gen_k5
def nop(n):
    k = Kernel(f"nop{n}_kernel", grid=256, block=64, lds=0, vgpr=8, sgpr=16)
    k.e("s_endpgm")
    return k
base = [gen_k0(), gen_k1(), gen_k2(), gen_k3(), gen_k4(), gen_k5()]
emit_file(base + [nop(i) for i in range(4)], "x_nop_end.s")
emit_file([nop(i) for i in range(4)] + base, "x_nop_front.s")
emit_file(base, "x_base.s")
```

```python
import struct

def f32bits(x):
    return struct.unpack("<I", struct.pack("<f", x))[0]

class Kernel:
    def __init__(self, name, grid, block, lds=0, vgpr=128, sgpr=96):
        self.name = name; self.grid = grid; self.block = block; self.lds = lds
        self.vgpr = vgpr; self.sgpr = sgpr
        self.lines = []
        self._lab = 0
    def e(self, s):
        for l in s.strip("\n").split("\n"):
            l = l.strip()
            if not l: continue
            if l.endswith(":"):
                self.lines.append(l)
            else:
                self.lines.append("    " + l)
    def label(self, base):
        self._lab += 1
        return f"L_{self.name}_{base}_{self._lab}"
    def srd(self, d, base, off, size):
        if off:
            self.e(f"s_add_u32 s{d}, s{base}, {off}")
            self.e(f"s_addc_u32 s{d+1}, s{base+1}, 0")
        else:
            self.e(f"s_mov_b32 s{d}, s{base}")
            self.e(f"s_mov_b32 s{d+1}, s{base+1}")
        self.e(f"s_mov_b32 s{d+2}, {size}")
        self.e(f"s_mov_b32 s{d+3}, 0x20000")
    def stamp(self, i):
        if not getattr(self, "stamps", False): return
        self.e(f"s_memtime s[{70+2*i}:{71+2*i}]")
        if i == 0: self.e("s_memrealtime s[96:97]")
        self.e("s_waitcnt lgkmcnt(0)")
    def stamp_dump(self, n, wave_sgpr, wg):
        if not getattr(self, "stamps", False): return
        lab = self.label("nostamp")
        self.e(f"""
        s_mov_b64 exec, -1
        s_cmp_lg_u32 s2, {wg}
        s_cbranch_scc1 {lab}
        s_cmp_ge_u32 s{wave_sgpr}, 8
        s_cbranch_scc1 {lab}
        s_load_dwordx2 s[88:89], s[0:1], 88
        s_memrealtime s[98:99]
        s_waitcnt lgkmcnt(0)
        s_mov_b32 s92, s88
        s_mov_b32 s93, s89
        s_mov_b32 s94, 256
        s_mov_b32 s95, 0x20000
        s_lshl_b32 s90, s{wave_sgpr}, 5
        v_mov_b32 v1, 0
        """)
        for i in range(n):
            self.e(f"s_sub_u32 s91, s{70+2*i}, s70")
            self.e(f"v_mov_b32 v2, s91")
            self.e(f"buffer_store_dword v2, v1, s[92:95], s90 offen offset:{4*i}")
        self.e(f"s_sub_u32 s91, s98, s96")
        self.e(f"v_mov_b32 v2, s91")
        self.e(f"buffer_store_dword v2, v1, s[92:95], s90 offen offset:28")
        self.e(f"{lab}:")
    def stamp_dump2(self, n, wave_sgpr, wg):
        if not getattr(self, "stamps", False): return
        lab = self.label("nostamp")
        self.e(f"""
        s_mov_b64 exec, -1
        s_cmp_lg_u32 s2, {wg}
        s_cbranch_scc1 {lab}
        s_and_b32 s90, s{wave_sgpr}, 1
        s_cmp_lg_u32 s90, 0
        s_cbranch_scc1 {lab}
        s_cmp_ge_u32 s{wave_sgpr}, 8
        s_cbranch_scc1 {lab}
        s_load_dwordx2 s[88:89], s[0:1], 88
        s_memrealtime s[98:99]
        s_waitcnt lgkmcnt(0)
        s_mov_b32 s92, s88
        s_mov_b32 s93, s89
        s_mov_b32 s94, 256
        s_mov_b32 s95, 0x20000
        s_lshl_b32 s90, s{wave_sgpr}, 5
        v_mov_b32 v1, 0
        """)
        for i in range(n):
            self.e(f"s_sub_u32 s91, s{70+2*i}, s70")
            self.e(f"v_mov_b32 v2, s91")
            self.e(f"buffer_store_dword v2, v1, s[92:95], s90 offen offset:{4*i}")
        self.e(f"s_sub_u32 s91, s98, s96")
        self.e(f"v_mov_b32 v2, s91")
        self.e(f"buffer_store_dword v2, v1, s[92:95], s90 offen offset:60")
        self.e(f"{lab}:")
    def code_touch(self, target, end_label, part_sgpr, sbase, vaddr, vdst, lane_vgpr, nparts=32):
        lab = self.label("pc")
        self.e(f"""
        s_getpc_b64 s[{sbase}:{sbase+1}]
        {lab}:
        s_add_u32 s{sbase}, s{sbase}, {target}-{lab}
        s_addc_u32 s{sbase+1}, s{sbase+1}, 0
        s_mov_b32 s{sbase+2}, {end_label}-{target}
        s_mov_b32 s{sbase+3}, 0x20000
        s_lshl_b32 s{sbase+4}, s{part_sgpr}, 11
        v_lshlrev_b32 v{vaddr}, 5, v{lane_vgpr}
        v_add_u32 v{vaddr}, s{sbase+4}, v{vaddr}
        buffer_load_dword v{vdst}, v{vaddr}, s[{sbase}:{sbase+3}], 0 offen
        """)
    def tr(self, i):
        if not getattr(self, "trace", False): return
        self.e(f"s_memrealtime s[98:99]")
        self.e("s_waitcnt lgkmcnt(0)")
        self.e(f"s_mov_b32 s{64+i}, s98")
    def trf(self, i):
        if not getattr(self, "trace_front", False): return
        self.e(f"s_memrealtime s[98:99]")
        self.e("s_waitcnt lgkmcnt(0)")
        self.e(f"s_mov_b32 s{64+i}, s98")
    def trc(self, i):
        if not getattr(self, "trace", False): return
        self.e(f"s_memtime s[98:99]")
        self.e("s_waitcnt lgkmcnt(0)")
        self.e(f"s_mov_b32 s{64+i}, s98")
    def apply_trace(self, kid, n=24):
        new = ["    s_memrealtime s[98:99]", "    v_readfirstlane_b32 s97, v0"] + [f"    s_mov_b32 s{64+i}, 0" for i in range(n)] + ["    s_waitcnt lgkmcnt(0)", "    s_mov_b32 s64, s98"]
        for l in self.lines:
            if l.strip() == "s_endpgm": new += [f"    s_branch L_{self.name}_prof"]
            else: new.append(l)
        body = f"""
        s_mov_b64 exec, -1
        s_waitcnt vmcnt(0) lgkmcnt(0)
        s_cmp_ge_u32 s2, {self.grid}
        s_cbranch_scc1 L_{self.name}_prof2
        s_load_dwordx2 s[88:89], s[0:1], 96
        s_memrealtime s[98:99]
        s_waitcnt lgkmcnt(0)
        s_mov_b32 s{64+n-1}, s98
        s_add_u32 s92, s88, {0x8000000 + kid*0x100000}
        s_addc_u32 s93, s89, 0
        s_mov_b32 s94, 0x100000
        s_mov_b32 s95, 0x20000
        s_lshl_b32 s90, s2, 11
        v_mov_b32 v1, s97
        v_lshrrev_b32 v1, 6, v1
        v_lshlrev_b32 v1, 7, v1
        v_mbcnt_lo_u32_b32 v4, -1, 0
        v_mbcnt_hi_u32_b32 v4, -1, v4
        v_cmp_eq_u32 vcc, 0, v4
        s_and_saveexec_b64 s[88:89], vcc
        """
        for i in range(n):
            body += f"v_mov_b32 v2, s{64+i}\nbuffer_store_dword v2, v1, s[92:95], s90 offen offset:{4*i}\n"
        new += [f"L_{self.name}_prof:"] + ["    " + x.strip() for x in body.strip().split("\n")] + [f"L_{self.name}_prof2:", "    s_endpgm"]
        self.lines = new
        self.sgpr = 100
    def apply_prof(self, kid):
        new = ["    s_memrealtime s[96:97]", "    s_waitcnt lgkmcnt(0)"]
        n = 0
        for l in self.lines:
            if l.strip() == "s_endpgm":
                n += 1
                new += [f"    s_branch L_{self.name}_prof"]
            else:
                new.append(l)
        new += [f"L_{self.name}_prof:"] + ["    " + x.strip() for x in f"""
        s_mov_b64 exec, -1
        s_waitcnt vmcnt(0) lgkmcnt(0)
        s_cmp_ge_u32 s2, {self.grid}
        s_cbranch_scc1 L_{self.name}_prof2
        s_load_dwordx2 s[88:89], s[0:1], 96
        s_memrealtime s[98:99]
        s_waitcnt lgkmcnt(0)
        s_add_u32 s92, s88, {0x8000000 + kid*0x100000}
        s_addc_u32 s93, s89, 0
        s_mov_b32 s94, 0x100000
        s_mov_b32 s95, 0x20000
        s_lshl_b32 s90, s2, 7
        v_lshrrev_b32 v1, 6, v0
        v_lshlrev_b32 v1, 3, v1
        v_mov_b32 v2, s96
        v_mov_b32 v3, s98
        v_and_b32 v4, 63, v0
        v_cmp_eq_u32 vcc, 0, v4
        s_and_saveexec_b64 s[88:89], vcc
        buffer_store_dwordx2 v[2:3], v1, s[92:95], s90 offen
        """.strip().split("\n")] + [f"L_{self.name}_prof2:", "    s_endpgm"]
        self.lines = new
        self.sgpr = 100
    def text(self):
        h = f".globl {self.name}\n.p2align 8\n.type {self.name},@function\n{self.name}:\n"
        return h + "\n".join(self.lines) + "\n"
    def desc(self):
        acc = (self.vgpr + 3) // 4 * 4
        return f""".p2align 6
.amdhsa_kernel {self.name}
  .amdhsa_next_free_vgpr {self.vgpr}
  .amdhsa_next_free_sgpr {self.sgpr}
  .amdhsa_accum_offset {acc}
  .amdhsa_group_segment_fixed_size 0
  .amdhsa_kernarg_size 104
  .amdhsa_user_sgpr_count 2
  .amdhsa_user_sgpr_kernarg_segment_ptr 1
  .amdhsa_system_sgpr_workgroup_id_x 1
.end_amdhsa_kernel
"""
    def launch_line(self):
        return f"; @launch kernel={self.name} grid=({self.grid},1,1) block=({self.block},1,1) lds={self.lds}\n"

HEADER = """; Kernarg layout for this problem (104 bytes, ptrs only, base s[0:1]):
"""

def emit_file(kernels, path):
    out = HEADER
    for k in kernels: out += k.launch_line()
    out += '.amdgcn_target "amdgcn-amd-amdhsa--gfx950"\n.text\n'
    for k in kernels: out += k.text()
    out += '.section .rodata,"a"\n'
    for k in kernels: out += k.desc()
    open(path, "w").write(out)


class VM:
    def __init__(self, k): self.k = k; self.ops = []
    def issue(self, text, tag):
        self.k.e(text); self.ops.append(tag)
    def count_after(self, tag):
        idx = max(i for i, t in enumerate(self.ops) if t == tag)
        return len(self.ops) - 1 - idx
    def wait_str(self, tag):
        n = self.count_after(tag)
        assert n <= 63
        return f"vmcnt({n})"
    def wait(self, tag):
        self.k.e(f"s_waitcnt {self.wait_str(tag)}")
```

```python
from asmlib import *
from layout import *
import math

QA1, QA2, QB1, QB2 = 8, 12, 14, 18
KB = [(20, 24), (26, 30)]
VB = [32, 40]
SA, SB, PA, PB, OA, OB = 48, 64, 80, 88, 96, 112
AK1, AK2, AV = 5, 6, 7
NIT = 16
STRIDE = KVBLK
SEG = 16
QREG = 16 * KVBLK
QSH = 64 * KVBLK
XS = QSH; RSB = QSH + 9216; STX = RSB + 256; CNT = STX + 2304
OFB = 3 * 16 * KVBLK
YTB = 76 * 512
HB = 2 * YTB
AXL = HB
SPIN = 0x200000
P2BAR = 3
QBAR = True
import os
FINE = bool(os.environ.get('FINE'))

def poll(k, name, load, ncmp, execmask=None, sleep=0):
    e = k.e
    lp = k.label(name); dn = k.label(name + "d")
    if execmask: e(execmask)
    e(f"s_mov_b32 s11, {SPIN}")
    e(f"{lp}:")
    e(load)
    e("s_waitcnt vmcnt(0)")
    if ncmp == 1:
        e("v_cmp_ne_u32 vcc, s3, v120")
    else:
        for i in range(ncmp): e(f"v_xor_b32 v{120+i}, s3, v{120+i}")
        e("v_or3_b32 v120, v120, v121, v122")
        e("v_or_b32 v120, v120, v123")
        e("v_cmp_ne_u32 vcc, 0, v120")
    e(f"""
    s_cbranch_vccz {dn}
    {"s_sleep " + str(sleep) if sleep else ""}
    s_sub_u32 s11, s11, 1
    s_cmp_lg_u32 s11, 0
    s_cbranch_scc1 {lp}
    {dn}:
    """)
    if execmask: e("s_mov_b64 exec, -1")

def setflag(k, soff):
    k.e(f"""
    v_mov_b32 v120, s3
    v_mov_b32 v121, 0
    s_mov_b64 exec, 1
    buffer_store_dword v120, v121, s[12:15], s{soff} offen sc1
    s_mov_b64 exec, -1
    """)

def chkp(e, regs, t):
    r = list(regs)
    e(f"v_max_u32 v{t}, v{r[0]}, v{r[1]}")
    for i in range(2, len(r), 2):
        e(f"v_max3_u32 v{t}, v{t}, v{r[i]}, v{r[i+1]}")
    e(f"v_cmp_eq_u32 vcc, -1, v{t}")

def split3(e, x, p1, p2, p3, t):
    e(f"""
    v_cvt_pk_bf16_f32 v{p1}, v{x}, v{x}
    v_lshlrev_b32 v{t}, 16, v{p1}
    v_sub_f32 v{x}, v{x}, v{t}
    v_cvt_pk_bf16_f32 v{p2}, v{x}, v{x}
    v_lshlrev_b32 v{t}, 16, v{p2}
    v_sub_f32 v{x}, v{x}, v{t}
    v_cvt_pk_bf16_f32 v{p3}, v{x}, v{x}
    """)

def xg_sum(e, regs, tmp):
    for op in ("v_permlane16_swap_b32", "v_permlane32_swap_b32"):
        for r, t in zip(regs, tmp): e(f"v_mov_b32 v{t}, v{r}")
        e("s_nop 1")
        for r, t in zip(regs, tmp): e(f"{op} v{r}, v{t}")
        e("s_nop 1")
        for r, t in zip(regs, tmp): e(f"v_add_f32 v{r}, v{r}, v{t}")

def emit_back(k, QST, QP):
    e = k.e
    T0 = SA
    KNL = QST - 16
    e(f"""
    s_load_dwordx4 s[24:27], s[0:1], 48
    s_load_dwordx2 s[28:29], s[0:1], 0
    s_load_dwordx2 s[30:31], s[0:1], 80
    s_mov_b32 s33, s34
    v_and_b32 v3, 31, v2
    v_lshrrev_b32 v4, 5, v2
    s_and_b32 s7, s6, 3
    s_lshr_b32 s8, s6, 2
    s_lshr_b32 s22, s2, 3
    s_and_b32 s23, s2, 7
    s_cmp_lg_u32 s6, 4
    s_cbranch_scc1 L_kb_nopoll
    v_lshlrev_b32 v5, 7, v2
    s_mov_b32 s10, {WS_F3}
    s_mov_b32 s11, {SPIN}
    L_kb_kvp:
    buffer_load_dwordx4 v[8:11], v5, s[12:15], s10 offen sc1
    buffer_load_dwordx4 v[12:15], v5, s[12:15], s10 offen offset:16 sc1
    s_waitcnt vmcnt(0)
    v_xor_b32 v8, s3, v8
    v_xor_b32 v10, s3, v10
    v_xor_b32 v12, s3, v12
    v_xor_b32 v14, s3, v14
    v_or3_b32 v8, v8, v10, v12
    v_or_b32 v8, v8, v14
    v_cmp_ne_u32 vcc, 0, v8
    s_cbranch_vccz L_kb_kvk
    s_sub_u32 s11, s11, 1
    s_cmp_lg_u32 s11, 0
    s_cbranch_scc1 L_kb_kvp
    L_kb_kvk:
    """)
    for rot in (1, 2, 4, 8):
        e(f"v_max_f32_dpp v9, v9, v9 row_ror:{rot} row_mask:0xf bank_mask:0xf")
        e(f"v_max_f32_dpp v11, v11, v11 row_ror:{rot} row_mask:0xf bank_mask:0xf")
        e("s_nop 0")
    for op in ("v_permlane16_swap_b32", "v_permlane32_swap_b32"):
        e(f"""
        v_mov_b32 v12, v9
        v_mov_b32 v13, v11
        s_nop 1
        {op} v9, v12
        {op} v11, v13
        s_nop 1
        v_max_f32 v9, v9, v12
        v_max_f32 v11, v11, v13
        """)
    KN0, KN1 = T0+4, T0+5
    t0, t1, nA, nB = T0+6, T0+7, T0+8, T0+9
    e(f"""
    v_add_f32 v9, v9, v11
    v_mov_b32 v5, {KNL}
    ds_write_b32 v5, v9
    L_kb_nopoll:
    s_cmp_ge_u32 s8, 1
    s_cbranch_scc1 L_kb_noq
    v_mul_u32_u24 v{T0}, {QP}, v3
    s_mul_i32 s9, s7, 72
    s_add_u32 s9, s9, {QST}
    v_add_u32 v{T0}, s9, v{T0}
    v_lshl_add_u32 v{T0+1}, v4, 4, v{T0}
    ds_read2_b32 v[{QA1}:{QA1+1}], v{T0+1} offset0:0 offset1:1
    ds_read2_b32 v[{QA1+2}:{QA1+3}], v{T0+1} offset0:2 offset1:3
    ds_read_b32 v{QA2}, v{T0} offset:32
    ds_read2_b32 v[{QB1}:{QB1+1}], v{T0+1} offset0:9 offset1:10
    ds_read2_b32 v[{QB1+2}:{QB1+3}], v{T0+1} offset0:11 offset1:12
    ds_read_b32 v{QB2}, v{T0} offset:68
    s_waitcnt lgkmcnt(0)
    v_cmp_eq_u32 vcc, 0, v4
    s_nop 1
    v_cndmask_b32 v{QA2}, 0, v{QA2}, vcc
    v_cndmask_b32 v{QB2}, 0, v{QB2}, vcc
    """)
    for (q1, q2, n) in ((QA1, QA2, nA), (QB1, QB2, nB)):
        e(f"v_mov_b32 v{n}, 0")
        for r in [q1, q1+1, q1+2, q1+3, q2]:
            e(f"v_lshlrev_b32 v{t0}, 16, v{r}")
            e(f"v_and_b32 v{t1}, 0xffff0000, v{r}")
            e(f"v_fmac_f32 v{n}, v{t0}, v{t0}")
            e(f"v_fmac_f32 v{n}, v{t1}, v{t1}")
    e(f"""
    v_mov_b32 v{t0}, v{nA}
    v_mov_b32 v{t1}, v{nB}
    s_nop 1
    v_permlane32_swap_b32 v{nA}, v{t0}
    v_permlane32_swap_b32 v{nB}, v{t1}
    s_nop 1
    v_add_f32 v{nA}, v{nA}, v{t0}
    v_add_f32 v{nB}, v{nB}, v{t1}
    L_kb_noq:
    s_waitcnt lgkmcnt(0)
    """)
    k.trf(8)
    e("s_barrier")
    k.trf(9)
    e("""
    s_cmp_lt_u32 s6, 4
    s_cbranch_scc1 L_kb_nodma0
    s_sub_u32 s50, s6, 4
    s_min_u32 s50, s50, 9
    s_lshl_b32 s50, s50, 10
    """)
    for qq in range(4):
        e(f"s_add_u32 s11, s50, {qq*QREG}")
        e("s_mov_b32 m0, s11")
        e(f"s_add_u32 s9, s11, {WS_KV}")
        e("buffer_load_dwordx4 v1, s[12:15], s9 offen sc1 lds")
    e("L_kb_nodma0:")
    e(f"""
    s_mul_i32 s11, s8, {QREG}
    v_add_u32 v{AK1}, s11, v1
    v_lshlrev_b32 v{AK2}, 2, v3
    s_add_u32 s9, s11, 1024
    v_add_u32 v{AK2}, s9, v{AK2}
    v_mov_b32 v{AV}, 4
    v_subrev_u32 v{t0}, 20, v3
    v_cmp_gt_u32 vcc, 8, v{t0}
    s_nop 1
    v_cndmask_b32 v{AV}, v{AV}, 0, vcc
    v_cmp_gt_u32 vcc, 19, v3
    s_nop 1
    v_cndmask_b32 v{AV}, v{AV}, v3, vcc
    v_lshlrev_b32 v{AV}, 4, v{AV}
    v_mul_u32_u24 v{t0}, 304, v4
    s_add_u32 s9, s11, 1152
    v_add3_u32 v{AV}, v{AV}, v{t0}, s9
    v_mov_b32 v{KB[0][1]+1}, 0x3f803f80
    v_mov_b32 v{KB[1][1]+1}, 0x3f803f80
    s_mul_i32 s9, s7, 3072
    s_add_u32 s9, s9, {QSH}
    v_add_u32 v{PB+7}, s9, v1
    s_mul_i32 s36, s2, 21846
    s_lshr_b32 s36, s36, 16
    s_mul_i32 s37, s36, 3
    s_sub_u32 s37, s2, s37
    s_lshl_b32 s36, s36, 2
    s_add_u32 s36, s36, s7
    s_mul_i32 s38, s37, 6
    s_mul_i32 s44, s38, {32*9216}
    s_lshl_b32 s45, s36, 5
    s_add_u32 s44, s44, s45
    s_mul_i32 s46, s36, 18
    s_add_u32 s46, s46, s38
    s_lshl_b32 s46, s46, 10
    s_add_u32 s46, s46, {WS_W1F}
    s_mul_i32 s50, s2, 7282
    s_lshr_b32 s50, s50, 16
    s_mul_i32 s51, s50, 9
    s_sub_u32 s51, s2, s51
    s_lshl_b32 s51, s51, 2
    s_add_u32 s51, s51, s7
    s_mul_i32 s52, s50, 21846
    s_lshr_b32 s52, s52, 16
    s_mul_i32 s53, s52, 3
    s_sub_u32 s53, s50, s53
    s_mul_i32 s53, s53, 6
    s_mul_i32 s49, s52, 36
    s_add_u32 s49, s49, s51
    s_mul_i32 s49, s49, 18
    s_add_u32 s49, s49, s53
    s_lshl_b32 s49, s49, 10
    s_add_u32 s49, s49, {WS_W2F}
    s_mul_i32 s48, s50, {6*32*1152}
    s_lshl_b32 s45, s51, 5
    s_add_u32 s48, s48, s45
    s_mov_b32 s16, s24
    s_mov_b32 s17, s25
    s_mov_b32 s18, 5308416
    s_mov_b32 s19, 0x20000
    s_mov_b32 s56, s26
    s_mov_b32 s57, s27
    s_mov_b32 s58, 5308416
    s_mov_b32 s59, 0x20000
    s_cmp_ge_u32 s8, 1
    s_cbranch_scc1 L_kb_qdone
    v_mov_b32 v{KN1}, {KNL}
    ds_read_b32 v{KN0}, v{KN1}
    s_waitcnt lgkmcnt(0)
    v_mul_f32 v{nA}, v{nA}, v{KN0}
    v_mul_f32 v{nB}, v{nB}, v{KN0}
    v_sqrt_f32 v{PA}, v{nA}
    v_sqrt_f32 v{PA+1}, v{nB}
    s_nop 0
    v_max_f32 v{t0}, v{PA}, v{PA+1}
    v_mov_b32 v{t1}, 0x42700000
    v_cmp_nle_f32 vcc, v{t0}, v{t1}
    s_cbranch_vccnz L_kb_fallback
    L_kb_shift:
    """)
    for (q2, n) in ((QA2, PA), (QB2, PA+1)):
        e(f"""
        v_sub_f32 v{n}, 0, v{n}
        v_cvt_pk_bf16_f32 v{PA+2}, v{n}, v{n}
        v_lshlrev_b32 v{PA+2}, 16, v{PA+2}
        v_sub_f32 v{n}, v{n}, v{PA+2}
        v_cvt_pk_bf16_f32 v{PA+3}, v{n}, v{n}
        v_lshlrev_b32 v{PA+3}, 16, v{PA+3}
        v_sub_f32 v{n}, v{n}, v{PA+3}
        v_cvt_pk_bf16_f32 v{PA+2}, v{PA+2}, v{PA+3}
        v_cvt_pk_bf16_f32 v{PA+3}, v{n}, 0
        v_cmp_eq_u32 vcc, 0, v4
        s_nop 1
        v_cndmask_b32 v{q2+1}, v{PA+3}, v{PA+2}, vcc
        """)
    def off(i): return (i % SEG) * STRIDE
    def rdK(i):
        k1, k2 = KB[i % 2]
        return [f"ds_read_b128 v[{k1}:{k1+3}], v{AK1} offset:{off(i)}", f"ds_read_b32 v{k2}, v{AK2} offset:{off(i)}"]
    def rdV(i):
        v = VB[i % 2]
        return [f"ds_read_b128 v[{v}:{v+3}], v{AV} offset:{off(i)}", f"ds_read_b128 v[{v+4}:{v+7}], v{AV} offset:{off(i)+608}"]
    def bumpK(): return [f"v_add_u32 v{AK1}, {SEG*STRIDE}, v{AK1}", f"v_add_u32 v{AK2}, {SEG*STRIDE}, v{AK2}"]
    def bumpV(): return [f"v_add_u32 v{AV}, {SEG*STRIDE}, v{AV}"]
    def QK(S, q1, q2, i):
        k1, k2 = KB[i % 2]
        return [f"v_mfma_f32_32x32x8_bf16 v[{S}:{S+15}], v[{k2}:{k2+1}], v[{q2}:{q2+1}], 0",
                f"v_mfma_f32_32x32x16_bf16 v[{S}:{S+15}], v[{k1}:{k1+3}], v[{q1}:{q1+3}], v[{S}:{S+15}]"]
    def PV(O, P, i):
        v = VB[i % 2]
        return [f"v_mfma_f32_32x32x16_bf16 v[{O}:{O+15}], v[{v}:{v+3}], v[{P}:{P+3}], v[{O}:{O+15}]",
                f"v_mfma_f32_32x32x16_bf16 v[{O}:{O+15}], v[{v+4}:{v+7}], v[{P+4}:{P+7}], v[{O}:{O+15}]"]
    def phase(mf, S, P, extra=()):
        extra = list(extra)
        mf = list(mf) + [None] * (4 - len(mf))
        for gidx in range(4):
            if mf[gidx]: e(mf[gidx])
            elif gidx > 0: e("s_nop 0")
            if gidx > 0:
                for c in range(2):
                    a = 4*(gidx-1) + 2*c
                    e(f"v_cvt_pk_bf16_f32 v{P + a//2}, v{S+a}, v{S+a+1}")
            for x in range(4):
                e(f"v_exp_f32 v{S+4*gidx+x}, v{S+4*gidx+x}")
            if gidx < 3:
                n = (len(extra) + (2 - gidx)) // (3 - gidx)
                for _ in range(n): e(extra.pop(0))
            else:
                e(f"v_cvt_pk_bf16_f32 v{P+6}, v{S+12}, v{S+13}")
                e(f"v_cvt_pk_bf16_f32 v{P+7}, v{S+14}, v{S+15}")
    e(f"""
    ds_write_b128 v{PB+7}, v[8:11]
    ds_write_b128 v{PB+7}, v[12:15] offset:1024
    ds_write_b128 v{PB+7}, v[16:19] offset:2048
    L_kb_qdone:
    """)
    e("s_waitcnt vmcnt(0) lgkmcnt(0)\ns_barrier")
    k.tr(1)
    k.trc(3)
    for x in rdK(0) + rdV(0): e(x)
    e(f"""
    ds_read_b128 v[8:11], v{PB+7}
    ds_read_b128 v[12:15], v{PB+7} offset:1024
    ds_read_b128 v[16:19], v{PB+7} offset:2048
    s_mul_i32 s47, s8, {QREG}
    s_mul_i32 s9, s7, 9472
    s_add_u32 s47, s47, s9
    s_cmp_lt_u32 s6, 8
    s_cbranch_scc1 L_kb_go
    """)
    for qq in range(4):
        for r in range(4):
            e(f"s_add_u32 s11, s6, {2 + 8*r}")
            if r == 3: e("s_min_u32 s11, s11, 36")
            e("s_lshl_b32 s11, s11, 10")
            e(f"s_add_u32 s11, s11, {qq*QREG}")
            e("s_mov_b32 m0, s11")
            e(f"s_add_u32 s9, s11, {WS_KV}")
            e("buffer_load_dwordx4 v1, s[12:15], s9 offen sc1 lds")
    e("L_kb_go:")
    e(f"v_mov_b32 v{KB[0][1]+1}, 0x3f803f80\nv_mov_b32 v{KB[1][1]+1}, 0x3f803f80")
    for i in range(16):
        e(f"v_mov_b32 v{OA+i}, 0")
        e(f"v_mov_b32 v{OB+i}, 0")
    e("s_waitcnt lgkmcnt(0)")
    if QBAR:
        e(f"""
        s_cmp_lt_u32 s6, 8
        s_cbranch_scc1 L_kb_go2
        s_waitcnt vmcnt(0)
        s_barrier
        v_mov_b32 v{PA}, {CNT}
        ds_write_b128 v{PA}, v[{OA}:{OA+3}]
        ds_write_b128 v{PA}, v[{OA}:{OA+3}] offset:16
        s_cmp_lg_u32 s6, 15
        s_cbranch_scc1 L_kb_nf2b
        v_lshlrev_b32 v{PA+1}, 7, v2
        s_mov_b32 s10, {WS_F2B}
        s_mov_b32 s11, {SPIN}
        L_kb_f2bp:
        buffer_load_dwordx4 v[{PA+4}:{PA+7}], v{PA+1}, s[12:15], s10 offen sc1
        s_waitcnt vmcnt(0)
        v_xor_b32 v{PA+4}, s3, v{PA+4}
        v_xor_b32 v{PA+5}, s3, v{PA+5}
        v_xor_b32 v{PA+6}, s3, v{PA+6}
        v_xor_b32 v{PA+7}, s3, v{PA+7}
        v_or3_b32 v{PA+4}, v{PA+4}, v{PA+5}, v{PA+6}
        v_or_b32 v{PA+4}, v{PA+4}, v{PA+7}
        v_cmp_ne_u32 vcc, 0, v{PA+4}
        s_cbranch_vccz L_kb_nf2b
        s_sleep 4
        s_sub_u32 s11, s11, 1
        s_cmp_lg_u32 s11, 0
        s_cbranch_scc1 L_kb_f2bp
        L_kb_nf2b:
        s_waitcnt lgkmcnt(0)
        s_barrier
        L_kb_go2:
        """)
    for x in QK(SA, QA1, QA2, 0): e(x)
    e("s_nop 7\ns_nop 3")
    for i in range(NIT):
        def bar_if(q, tag):
            e(f"s_cmp_lg_u32 s8, {q}\ns_cbranch_scc1 L_kb_nb{tag}\ns_barrier\nL_kb_nb{tag}:")
        if QBAR:
            if i == 1: bar_if(1, "a")
            if i == 2: bar_if(1, "b")
            if i == 3: bar_if(0, "c")
            if i == 5: bar_if(0, "d")
        else:
            if i == 3:
                e("s_waitcnt vmcnt(0)\ns_barrier")
                e(f"v_mov_b32 v{PA}, {CNT}\nv_mov_b32 v{PA+4}, 0\nv_mov_b32 v{PA+5}, 0\nv_mov_b32 v{PA+6}, 0\nv_mov_b32 v{PA+7}, 0\nds_write_b128 v{PA}, v[{PA+4}:{PA+7}]\nds_write_b128 v{PA}, v[{PA+4}:{PA+7}] offset:16")
            if i == 4: e("s_barrier")
        if i == 4:
            e(f"""
            s_cmp_ge_u32 s6, 3
            s_cbranch_scc1 L_kb_notouch
            s_cmp_ge_u32 s2, 216
            s_cbranch_scc1 L_kb_notouch
            v_mul_u32_u24 v{PA}, 9216, v2
            v_mul_u32_u24 v{PA+1}, 1152, v2
            s_mul_i32 s9, s7, {64*9216}
            s_add_u32 s9, s9, s44
            s_mul_i32 s10, s7, {64*1152}
            s_add_u32 s10, s10, s48
            buffer_load_dword v0, v{PA}, s[16:19], s9 offen
            buffer_load_dword v0, v{PA+1}, s[56:59], s10 offen
            L_kb_notouch:
            """)
        ex1 = []
        if i + 1 < NIT:
            if (i + 1) % SEG == 0: ex1 += bumpK()
            ex1 += rdK(i + 1)
        mf = QK(SB, QB1, QB2, i) + (PV(OB, PB, i-1) if i > 0 else [])
        phase(mf, SA, PA, ex1)
        e("s_waitcnt lgkmcnt(0)")
        exv = []
        if i + 1 < NIT:
            if (i + 1) % SEG == 0: exv += bumpV()
            exv += rdV(i + 1)
        mf = (QK(SA, QA1, QA2, i+1) if i + 1 < NIT else [None, None]) + PV(OA, PA, i)
        phase(mf, SB, PB, exv)
    e("s_nop 1")
    for x in PV(OB, PB, NIT-1): e(x)
    k.tr(2)
    def pc(kk): return 1024 * kk
    e(f"""
    s_cmp_eq_u32 s8, 3
    s_cbranch_scc1 L_kb_b3
    s_setprio 3
    v_and_b32 v3, 15, v2
    v_lshrrev_b32 v4, 4, v2
    s_lshl_b32 s9, s8, 2
    s_add_u32 s9, s9, {CNT}
    v_mov_b32 v8, s9
    v_mov_b32 v9, 1
    s_mov_b64 exec, 1
    ds_add_u32 v8, v9
    s_mov_b64 exec, -1
    s_mov_b32 s11, {SPIN}
    L_kb_qspin:
    ds_read_b32 v10, v8
    s_waitcnt lgkmcnt(0)
    v_readfirstlane_b32 s9, v10
    s_cmp_ge_u32 s9, 4
    s_cbranch_scc1 L_kb_qok
    s_sleep 2
    s_sub_u32 s11, s11, 1
    s_cmp_lg_u32 s11, 0
    s_cbranch_scc1 L_kb_qspin
    L_kb_qok:
    s_cmp_ge_u32 s8, 2
    s_cbranch_scc1 L_kb_deposit
    s_cmp_ge_u32 s2, 216
    s_cbranch_scc1 L_kb_deposit
    v_lshrrev_b32 v84, 1, v2
    v_and_b32 v85, 1, v2
    v_lshlrev_b32 v85, 4, v85
    v_and_b32 v87, 1, v3
    v_mul_u32_u24 v87, 1152, v87
    v_lshl_add_u32 v87, v4, 4, v87
    s_lshl_b32 s45, s38, 6
    s_add_u32 s45, s45, {WS_CBT}
    v_lshlrev_b32 v89, 8, v4
    v_lshl_add_u32 v89, v3, 3, v89
    v_add_u32 v89, s47, v89
    s_mov_b32 s50, {32*9216}
    s_mov_b32 s51, 9216
    s_cmp_eq_u32 s8, 0
    s_cbranch_scc1 L_kb_sgo
    s_mov_b32 s16, s56
    s_mov_b32 s17, s57
    s_mov_b32 s44, s48
    s_mov_b32 s46, s49
    s_mov_b32 s50, {32*1152}
    s_mov_b32 s51, 1152
    L_kb_sgo:
    v_mul_lo_u32 v86, s51, v84
    v_add_u32 v86, v86, v85
    """)
    for c in range(6):
        e(f"s_add_u32 s11, s47, {1024*c}")
        e("s_mov_b32 m0, s11")
        e("s_nop 0")
        e("buffer_load_dwordx4 v86, s[16:19], s44 offen lds")
        e("s_add_u32 s44, s44, s50")
    for c in range(6):
        e(f"buffer_load_dwordx4 v[{56+4*c}:{59+4*c}], v87, s[12:15], s45 offen offset:{64*c} sc1")
    e("s_waitcnt vmcnt(0)")
    for c in range(6):
        e(f"ds_read_b64_tr_b16 v[{8+4*c}:{9+4*c}], v89 offset:{1024*c}")
        e(f"ds_read_b64_tr_b16 v[{10+4*c}:{11+4*c}], v89 offset:{1024*c+128}")
    for c in range(6):
        bb = 8 + 4*c
        e(f"s_waitcnt lgkmcnt({2*(5-c)})")
        if c == 4: e("s_add_u32 s46, s46, 4096")
        e(f"buffer_store_dwordx4 v[{bb}:{bb+3}], v1, s[12:15], s46 offen offset:{1024*(c%4)} sc1")
        cc = "0" if c == 0 else "v[80:83]"
        e(f"v_mfma_f32_16x16x32_bf16 v[80:83], v[{bb}:{bb+3}], v[{56+4*c}:{59+4*c}], {cc}")
    e(f"""
    s_cmp_eq_u32 s8, 1
    s_cbranch_scc1 L_kb_deposit
    v_lshlrev_b32 v86, 7, v4
    v_lshl_add_u32 v86, v3, 2, v86
    s_lshl_b32 s46, s36, 9
    s_lshl_b32 s9, s37, 3
    s_add_u32 s46, s46, s9
    s_add_u32 s46, s46, {WS_UT}
    v_cmp_gt_u32 vcc, 2, v3
    s_and_saveexec_b64 s[34:35], vcc
    s_nop 3
    buffer_store_dword v80, v86, s[12:15], s46 offen sc1
    buffer_store_dword v81, v86, s[12:15], s46 offen offset:32 sc1
    buffer_store_dword v82, v86, s[12:15], s46 offen offset:64 sc1
    buffer_store_dword v83, v86, s[12:15], s46 offen offset:96 sc1
    s_mov_b64 exec, s[34:35]
    L_kb_deposit:
    v_add_u32 v{AK1}, s47, v1
    ds_write_b128 v{AK1}, v[{OA}:{OA+3}]
    ds_write_b128 v{AK1}, v[{OA+4}:{OA+7}] offset:{pc(1)}
    ds_write_b128 v{AK1}, v[{OB}:{OB+3}] offset:{pc(2)}
    ds_write_b128 v{AK1}, v[{OB+4}:{OB+7}] offset:{pc(3)}
    ds_write_b128 v{AK1}, v[{OA+8}:{OA+11}] offset:{pc(4)}
    ds_write_b128 v{AK1}, v[{OB+8}:{OB+11}] offset:{pc(5)}
    s_waitcnt lgkmcnt(0)
    """)
    e(f"""
    s_cmp_ge_u32 s8, 2
    s_cbranch_scc1 L_kb_nofs
    """)
    e("""
    s_waitcnt vmcnt(0)
    """)
    k.tr(22)
    e(f"""
    s_lshl_b32 s9, s8, 2
    s_add_u32 s9, s9, {CNT+16}
    v_mov_b32 v120, s9
    v_mov_b32 v121, 1
    s_mov_b64 exec, 1
    ds_add_rtn_u32 v122, v120, v121
    s_waitcnt lgkmcnt(0)
    s_mov_b64 exec, -1
    v_readfirstlane_b32 s9, v122
    s_lshl_b32 s10, s20, 7
    s_lshl_b32 s11, s21, 2
    s_add_u32 s10, s10, s11
    s_mul_i32 s11, s8, {WS_FS2 - WS_FS}
    s_add_u32 s10, s10, s11
    s_add_u32 s10, s10, {WS_FS}
    s_cmp_lg_u32 s9, 3
    s_cbranch_scc1 L_kb_nofs
    """)
    setflag(k, 10)
    e(f"""
    L_kb_nofs:
    s_cmp_ge_u32 s6, 3
    s_cbranch_scc1 L_kb_noax
    s_mul_i32 s9, s23, 27
    v_add_u32 v5, s9, v2
    v_lshrrev_b32 v6, 2, v5
    v_and_b32 v5, 3, v5
    v_lshlrev_b32 v5, 2, v5
    v_lshl_add_u32 v6, v6, 7, v5
    v_lshlrev_b32 v5, 7, v2
    s_mov_b32 s10, {WS_FS}
    """)
    poll(k, "fs", "buffer_load_dword v120, v6, s[12:15], s10 offen sc1", 1, "s_mov_b64 exec, 0x7ffffff", sleep=4)
    k.tr(8)
    e(f"""
    s_mov_b32 s9, s6
    s_mul_i32 s10, s23, 663552
    s_mul_i32 s11, s22, 20736
    s_add_u32 s10, s10, s11
    s_mul_i32 s11, s9, 6912
    s_add_u32 s10, s10, s11
    s_add_u32 s10, s10, {WS_W1F}
    buffer_load_dword v8, v5, s[12:15], s10 offen
    v_lshlrev_b32 v6, 5, v2
    s_mul_i32 s10, s23, 18432
    s_mul_i32 s11, s9, 6144
    s_add_u32 s10, s10, s11
    s_add_u32 s10, s10, {WS_UT}
    s_mov_b32 s40, 0xffff
    """)
    for r in range(3):
        e(f"buffer_load_dwordx4 v[{16+8*r}:{19+8*r}], v6, s[12:15], s10 offen sc1")
        e(f"buffer_load_dwordx2 v[{20+8*r}:{21+8*r}], v6, s[12:15], s10 offen offset:16 sc1")
        if r < 2: e("s_add_u32 s10, s10, 2048")
    for r in range(3):
        b = 16 + 8*r; o = 96 + 8*r
        e(f"s_waitcnt vmcnt({2*(2-r)})")
        e(f"""
        v_add_f32 v40, v{b}, v{b+2}
        v_add_f32 v41, v{b+1}, v{b+3}
        v_add_f32 v40, v40, v{b+4}
        v_add_f32 v41, v41, v{b+5}
        """)
        split3(e, 40, o, 43, 44, 42)
        split3(e, 41, o+3, 45, 46, 42)
        e(f"""
        v_bfi_b32 v{o+1}, s40, v43, v{o}
        v_bfi_b32 v{o+2}, s40, v43, v44
        v_bfi_b32 v{o+4}, s40, v45, v{o+3}
        v_bfi_b32 v{o+5}, s40, v45, v46
        v_mov_b32 v{o+6}, 0
        v_mov_b32 v{o+7}, 0
        """)
    e(f"""
    s_cmp_lg_u32 s2, 0
    s_cbranch_scc1 L_kb_noax
    s_cmp_lg_u32 s6, 2
    s_cbranch_scc1 L_kb_noax
    """)
    e(f"""
    s_add_u32 s9, s33, 1
    v_mov_b32 v120, s9
    v_mov_b32 v121, 0
    s_mov_b32 s9, {WS_EPB}
    s_mov_b64 exec, 1
    buffer_store_dword v120, v121, s[12:15], s9 offen sc1
    s_mov_b64 exec, -1
    L_kb_noax:
    """)
    A = 8
    XR = 80
    e(f"""
    s_cmp_ge_u32 s6, 9
    s_cbranch_scc1 L_kb_b3
    s_mul_i32 s36, s21, 9
    s_add_u32 s36, s36, s6
    s_mul_i32 s10, s36, 18432
    s_add_u32 s10, s10, {WS_WO}
    """)
    for s in range(18):
        if s and s % 4 == 0: e("s_add_u32 s10, s10, 4096")
        e(f"buffer_load_dwordx4 v[{A+4*s}:{A+4*s+3}], v1, s[12:15], s10 offen offset:{1024*(s%4)} sc1")
    k.srd(16, 28, 0, ACT_BYTES)
    e(f"""
    v_mul_u32_u24 v7, 1152, v3
    v_lshl_add_u32 v7, v4, 3, v7
    v_lshlrev_b32 v6, 4, v4
    s_mul_i32 s37, s20, 36864
    s_lshl_b32 s9, s36, 5
    s_add_u32 s37, s37, s9
    s_add_u32 s38, s37, 18432
    s_lshl_b32 s9, s36, 6
    s_add_u32 s10, s9, 4608
    s_add_u32 s9, s9, 9216
    buffer_load_dwordx2 v[{XR}:{XR+1}], v7, s[16:19], s37 offen
    buffer_load_dwordx2 v[{XR+2}:{XR+3}], v7, s[16:19], s38 offen
    buffer_load_dwordx4 v[{XR+4}:{XR+7}], v6, s[12:15], s10 offen sc1
    buffer_load_dwordx4 v[{XR+8}:{XR+11}], v6, s[12:15], s9 offen sc1
    L_kb_b3:
    s_setprio 0
    """)
    k.tr(4)
    e(f"""
    s_waitcnt lgkmcnt(0)
    s_barrier
    """)
    k.tr(5)
    k.trc(11)
    e(f"""
    s_cmp_lg_u32 s8, 3
    s_cbranch_scc1 L_kb_b4
    """)
    for src in range(3):
        e(f"s_mul_i32 s11, s7, 9472")
        e(f"s_add_u32 s11, s11, {src*QREG}")
        e(f"v_add_u32 v{AK1}, s11, v1")
        for t in range(2):
            for c in range(3):
                r = 8 + 24*src + 12*t + 4*c
                e(f"ds_read_b128 v[{r}:{r+3}], v{AK1} offset:{pc(2*t + c if c < 2 else 4 + t)}")
    e(f"""
    s_mul_i32 s9, s7, 36
    v_lshlrev_b32 v{AK2}, 2, v4
    v_add_u32 v{AK2}, s9, v{AK2}
    v_lshlrev_b32 v{AV}, 4, v3
    s_mul_i32 s9, s21, 9216
    s_add_u32 s9, s9, {OFB}
    v_add_u32 v{AV}, s9, v{AV}
    """)
    for src in range(3):
        e(f"s_waitcnt lgkmcnt({6*(2-src)})")
        for t, O in enumerate((OA, OB)):
            for i in range(11): e(f"v_add_f32 v{O+i}, v{O+i}, v{8 + 24*src + 12*t + i}")
    e(f"""
    v_mov_b32 v8, v{OA+10}
    v_mov_b32 v9, v{OB+10}
    s_nop 1
    v_permlane32_swap_b32 v{OA+10}, v8
    v_permlane32_swap_b32 v{OB+10}, v9
    s_nop 1
    v_rcp_f32 v8, v{OA+10}
    v_rcp_f32 v9, v{OB+10}
    s_nop 0
    """)
    for t, O in enumerate((OA, OB)):
        for i in range(10): e(f"v_mul_f32 v{O+i}, v{O+i}, v{8+t}")
        for i in range(5): e(f"v_cvt_pk_bf16_f32 v{PA+6*t+i}, v{O+2*i}, v{O+2*i+1}")
    for t in range(2):
        for i, dl in enumerate((0, 2, 8, 10, 16)):
            a = 12 + 5*t + i
            e(f"v_add_u32 v10, {18*t + dl}, v{AK2}")
            e(f"v_lshrrev_b32 v11, 3, v10")
            e(f"v_and_b32 v10, 7, v10")
            e(f"v_lshl_add_u32 v11, v11, 9, v{AV}")
            e(f"v_lshl_add_u32 v{a}, v10, 1, v11")
            if i < 4: e(f"ds_write_b32 v{a}, v{PA+6*t+i}")
    e(f"""
    s_mov_b32 exec_hi, 0
    ds_write_b32 v16, v{PA+4}
    ds_write_b32 v21, v{PA+10}
    s_mov_b64 exec, -1
    v_and_b32 v3, 15, v2
    v_lshrrev_b32 v4, 4, v2
    s_waitcnt lgkmcnt(0)
    L_kb_b4:
    s_barrier
    """)
    k.tr(6)
    e(f"""
    s_cmp_lt_u32 s6, 9
    s_cbranch_scc1 L_kb_nost9
    s_sub_u32 s9, s6, 9
    s_lshl_b32 s9, s9, 10
    s_mul_i32 s11, s21, 9216
    s_add_u32 s9, s9, s11
    s_add_u32 s10, s9, {OFB}
    v_add_u32 v5, s10, v1
    ds_read_b128 v[8:11], v5
    ds_read_b128 v[12:15], v5 offset:7168
    s_mul_i32 s10, s20, 36864
    s_add_u32 s10, s10, s9
    s_add_u32 s10, s10, {WS_O}
    s_add_u32 s11, s10, 7168
    s_waitcnt lgkmcnt(0)
    buffer_store_dwordx4 v[8:11], v1, s[12:15], s10 offen sc1
    s_cmp_ge_u32 s6, 11
    s_cbranch_scc1 L_kb_nost9
    buffer_store_dwordx4 v[12:15], v1, s[12:15], s11 offen sc1
    L_kb_nost9:
    s_cmp_ge_u32 s6, 3
    s_cbranch_scc1 L_kb_noaxw
    v_lshlrev_b32 v5, 9, v4
    v_lshl_add_u32 v5, v3, 4, v5
    s_mul_i32 s11, s6, 6144
    s_add_u32 s11, s11, {AXL}
    v_add_u32 v5, s11, v5
    ds_write_b128 v5, v[96:99]
    ds_write_b128 v5, v[100:103] offset:256
    ds_write_b128 v5, v[104:107] offset:2048
    ds_write_b128 v5, v[108:111] offset:2304
    ds_write_b128 v5, v[112:115] offset:4096
    ds_write_b128 v5, v[116:119] offset:4352
    v_mov_b32 v5, {AXL + 18432}
    v_mov_b32 v92, 0
    v_mov_b32 v93, 0
    v_mov_b32 v94, 0
    v_mov_b32 v95, 0
    ds_write_b128 v5, v[92:95]
    ds_write_b128 v5, v[92:95] offset:512
    ds_write_b128 v5, v[92:95] offset:1024
    L_kb_noaxw:
    """)
    e(f"""
    s_add_u32 s9, s21, 1
    s_mul_i32 s9, s9, 9216
    s_lshl_b32 s10, s6, 10
    s_add_u32 s10, s10, s9
    s_add_u32 s50, s6, 16
    s_min_u32 s50, s50, 26
    s_lshl_b32 s50, s50, 10
    s_add_u32 s50, s50, s9
    s_sub_u32 s9, s10, 36864
    s_cmp_ge_u32 s10, 36864
    s_cselect_b32 s10, s9, s10
    s_sub_u32 s9, s50, 36864
    s_cmp_ge_u32 s50, 36864
    s_cselect_b32 s50, s9, s50
    s_mul_i32 s9, s20, 36864
    s_add_u32 s9, s9, {WS_O}
    s_add_u32 s51, s10, s9
    s_add_u32 s52, s50, s9
    s_add_u32 s10, s10, {OFB}
    s_add_u32 s50, s50, {OFB}
    v_add_u32 v5, s10, v1
    v_add_u32 v0, s50, v1
    s_mov_b32 s11, {SPIN}
    L_kb_opoll:
    buffer_load_dwordx4 v[120:123], v1, s[12:15], s51 offen sc1
    buffer_load_dwordx4 v[124:127], v1, s[12:15], s52 offen sc1
    s_waitcnt vmcnt(0)
    v_max_u32 v6, v120, v121
    v_max3_u32 v6, v6, v122, v123
    v_max3_u32 v6, v6, v124, v125
    v_max3_u32 v6, v6, v126, v127
    v_cmp_eq_u32 vcc, -1, v6
    s_cbranch_vccz L_kb_ook
    s_sub_u32 s11, s11, 1
    s_cmp_lg_u32 s11, 0
    s_cbranch_scc1 L_kb_opoll
    L_kb_ook:
    ds_write_b128 v5, v[120:123]
    ds_write_b128 v0, v[124:127]
    s_waitcnt lgkmcnt(0)
    """)
    k.tr(9)
    e("s_barrier")
    k.tr(10)
    ACC = 4; AF = 52; BF = 112; RD = 5
    vm = VM(k)
    e(f"""
    s_mul_i32 s40, s23, 36
    s_mul_i32 s43, s6, 3
    s_add_u32 s40, s40, s43
    s_mul_i32 s40, s40, 18432
    s_add_u32 s44, s40, {WS_W2F}
    s_add_u32 s40, s40, {WS_W1F}
    s_add_u32 s41, s40, 18432
    s_add_u32 s42, s40, 36864
    s_add_u32 s45, s44, 18432
    s_add_u32 s46, s44, 36864
    s_mul_i32 s48, s23, 36
    s_add_u32 s48, s48, s43
    s_lshl_b32 s48, s48, 10
    s_add_u32 s48, s48, {WS_AX}
    """)
    def ldA(ph, s, track=True):
        so = 40 if ph == 1 else 44
        if s and s % 4 == 0:
            for i in range(3): e(f"s_add_u32 s{so+i}, s{so+i}, 4096")
        g = (s + (19 if ph == 2 else 0)) % RD
        for i in range(3):
            r = AF + 12*g + 4*i
            t = f"buffer_load_dwordx4 v[{r}:{r+3}], v1, s[12:15], s{so+i} offen offset:{1024*(s%4)} sc1"
            if track: vm.issue(t, f"A{ph}_{s}")
            else: e(t)
    e("""
    s_cmp_lt_u32 s6, 9
    s_cbranch_scc1 L_kb_op
    s_cmp_ge_u32 s6, 12
    s_cbranch_scc1 L_kb_h1
    """)
    for s in range(RD): ldA(1, s, track=False)
    e("s_branch L_kb_b8")
    e("L_kb_h1:")
    e(f"""
    s_mul_i32 s9, s23, 27
    v_add_u32 v5, s9, v2
    v_lshrrev_b32 v6, 2, v5
    v_and_b32 v5, 3, v5
    v_lshlrev_b32 v5, 2, v5
    v_lshl_add_u32 v6, v6, 7, v5
    v_lshlrev_b32 v5, 7, v2
    s_mov_b32 s10, {WS_FS2}
    """)
    poll(k, "fs2", "buffer_load_dword v120, v6, s[12:15], s10 offen sc1", 1, "s_mov_b64 exec, 0x7ffffff", sleep=4)
    e(f"""
    s_mul_i32 s10, s23, 663552
    s_mul_i32 s11, s22, 20736
    s_add_u32 s10, s10, s11
    s_mul_i32 s11, s7, 5184
    s_add_u32 s10, s10, s11
    s_add_u32 s10, s10, {WS_W2F}
    s_mov_b32 exec_hi, 0x1ff
    buffer_load_dword v8, v5, s[12:15], s10 offen
    s_mov_b64 exec, -1
    """)
    e("s_branch L_kb_b8")
    e("L_kb_op:")
    e(f"""
    v_lshlrev_b32 v5, 9, v4
    v_lshl_add_u32 v5, v3, 4, v5
    v_add_u32 v5, {OFB}, v5
    """)
    OB_ = 92
    def rd(s):
        b = OB_ + 8*(s % 3)
        e(f"ds_read_b128 v[{b}:{b+3}], v5 offset:{2048*s}")
        e(f"ds_read_b128 v[{b+4}:{b+7}], v5 offset:{2048*s+256}")
    rd(0); rd(1)
    e("s_waitcnt vmcnt(0)")
    for s in range(18):
        if s + 2 < 18: rd(s + 2)
        e(f"s_waitcnt lgkmcnt({2 * (min(18, s + 3) - (s + 1))})")
        b = OB_ + 8*(s % 3)
        c0 = "0" if s == 0 else "v[116:119]"; c1 = "0" if s == 0 else "v[120:123]"
        e(f"v_mfma_f32_16x16x32_bf16 v[116:119], v[{A+4*s}:{A+4*s+3}], v[{b}:{b+3}], {c0}")
        e(f"v_mfma_f32_16x16x32_bf16 v[120:123], v[{A+4*s}:{A+4*s+3}], v[{b+4}:{b+7}], {c1}")
    e("s_nop 7")
    X, GA, CB1 = XR, XR+4, XR+8
    C = 116; P_ = 24; U = 32
    for i in range(4): e(f"v_cvt_pk_bf16_f32 v{P_+i}, v{C+2*i}, v{C+2*i+1}")
    for i in range(4):
        e(f"v_lshlrev_b32 v{C+2*i}, 16, v{P_+i}")
        e(f"v_and_b32 v{C+2*i+1}, 0xffff0000, v{P_+i}")
    for i in range(8): e(f"v_mul_f32 v{C+i}, v{C+i}, v{GA+i%4}")
    for i in range(4): e(f"v_cvt_pk_bf16_f32 v{P_+i}, v{C+2*i}, v{C+2*i+1}")
    for i in range(4):
        e(f"v_lshlrev_b32 v{C+2*i}, 16, v{P_+i}")
        e(f"v_and_b32 v{C+2*i+1}, 0xffff0000, v{P_+i}")
        e(f"v_lshlrev_b32 v{U+2*i}, 16, v{X+i}")
        e(f"v_and_b32 v{U+2*i+1}, 0xffff0000, v{X+i}")
    for i in range(8): e(f"v_add_f32 v{C+i}, v{C+i}, v{U+i}")
    for i in range(4): e(f"v_cvt_pk_bf16_f32 v{P_+i}, v{C+2*i}, v{C+2*i+1}")
    e(f"""
    s_lshl_b32 s9, s6, 10
    s_add_u32 s10, s9, {XS}
    v_add_u32 v5, s10, v1
    ds_write_b128 v5, v[{P_}:{P_+3}]
    """)
    for i in range(4):
        e(f"v_lshlrev_b32 v{C+2*i}, 16, v{P_+i}")
        e(f"v_and_b32 v{C+2*i+1}, 0xffff0000, v{P_+i}")
    for i in range(8): e(f"v_mul_f32 v{U+i}, v{C+i}, v{CB1+i%4}")
    for i in range(4): e(f"v_cvt_pk_bf16_f32 v{28+i}, v{U+2*i}, v{U+2*i+1}")
    e(f"""
    s_mul_i32 s10, s20, 36864
    s_mul_i32 s11, s21, 9216
    s_add_u32 s10, s10, s11
    s_add_u32 s10, s10, s9
    s_add_u32 s10, s10, {WS_YF}
    v_permlane16_swap_b32 v28, v30
    v_permlane16_swap_b32 v29, v31
    s_nop 1
    """)
    e("buffer_store_dwordx4 v[28:31], v1, s[12:15], s10 offen sc1")
    e(f"""
    v_add_f32 v40, v{C}, v{C+1}
    v_add_f32 v41, v{C+4}, v{C+5}
    v_add_f32 v42, v{C+2}, v{C+3}
    v_add_f32 v43, v{C+6}, v{C+7}
    v_add_f32 v40, v40, v42
    v_add_f32 v41, v41, v43
    """)
    xg_sum(e, [40, 41], [42, 43])
    e("v_mul_f32 v40, 0x3d800000, v40\nv_mul_f32 v41, 0x3d800000, v41")
    for i in range(8): e(f"v_sub_f32 v{C+i}, v{C+i}, v{40 + i//4}")
    e(f"v_mul_f32 v44, v{C}, v{C}\nv_mul_f32 v46, v{C+4}, v{C+4}")
    for i in range(1, 4):
        e(f"v_fmac_f32 v44, v{C+i}, v{C+i}")
        e(f"v_fmac_f32 v46, v{C+4+i}, v{C+4+i}")
    xg_sum(e, [44, 46], [42, 43])
    e(f"""
    v_mov_b32 v45, v44
    v_mov_b32 v44, v40
    v_mov_b32 v47, v46
    v_mov_b32 v46, v41
    s_lshl_b32 s9, s6, 8
    s_add_u32 s9, s9, {STX}
    v_lshlrev_b32 v42, 3, v3
    v_add_u32 v42, s9, v42
    ds_write_b64 v42, v[44:45]
    ds_write_b64 v42, v[46:47] offset:128
    s_waitcnt lgkmcnt(0)
    L_kb_b8:
    s_barrier
    """)
    k.tr(12)
    e(f"""
    s_cmp_lt_u32 s6, 12
    s_cbranch_scc1 L_kb_ffn
    s_cmp_lg_u32 s6, 15
    s_cbranch_scc1 L_kb_nost
    """)
    e(f"v_and_b32 v26, 31, v2\nv_lshlrev_b32 v26, 3, v26\nv_add_u32 v27, {STX}, v26")
    for w in range(9): e(f"ds_read_b64 v[{32+2*w}:{33+2*w}], v27 offset:{256*w}")
    e("s_waitcnt lgkmcnt(0)")
    e("v_add_f32 v28, v32, v34")
    for w in range(2, 9): e(f"v_add_f32 v28, v28, v{32+2*w}")
    e(f"v_mul_f32 v28, {hex(f32bits(1.0/9))}, v28")
    e("v_add_f32 v29, v33, v35")
    for w in range(2, 9): e(f"v_add_f32 v29, v29, v{33+2*w}")
    e("v_mov_b32 v30, 0")
    for w in range(9):
        e(f"v_sub_f32 v31, v{32+2*w}, v28")
        e(f"v_fmac_f32 v30, v31, v31")
    e(f"""
    v_fmac_f32 v29, 0x41800000, v30
    v_lshlrev_b32 v26, 2, v26
    s_lshl_b32 s9, s20, 10
    s_lshl_b32 s37, s21, 3
    s_add_u32 s9, s9, s37
    s_add_u32 s9, s9, {WS_STATS}
    s_mov_b32 exec_hi, 0
    buffer_store_dwordx2 v[28:29], v26, s[12:15], s9 offen sc1
    s_mov_b64 exec, -1
    L_kb_nost:
    s_lshr_b32 s36, s7, 1
    s_and_b32 s37, s7, 1
    s_mul_i32 s37, s37, 3072
    s_mul_i32 s9, s36, {YTB}
    s_add_u32 s9, s9, s37
    v_add_u32 v5, s9, v1
    s_lshl_b32 s10, s22, 1
    s_add_u32 s10, s10, s36
    s_mul_i32 s10, s10, 36864
    s_add_u32 s10, s10, s37
    s_add_u32 s10, s10, {WS_YF}
    """)
    def yld(r):
        e(f"s_add_u32 s9, s10, {6144*r}")
        for j in range(3):
            R = 8 + 12*r + 4*j
            e(f"buffer_load_dwordx4 v[{R}:{R+3}], v1, s[12:15], s9 offen offset:{1024*j} sc1")
    def chk(regs): chkp(e, regs, 6)
    for r in range(6):
        e(f"s_mov_b32 s11, {SPIN}")
        if r > 0:
            e(f"s_waitcnt vmcnt({3*(5-r)})")
            e(f"s_branch L_kb_yc{r}")
        e(f"L_kb_yp{r}:")
        yld(r)
        e("s_waitcnt vmcnt(0)")
        e(f"L_kb_yc{r}:")
        chk(range(8 + 12*r, 20 + 12*r))
        e(f"""
        s_cbranch_vccz L_kb_yk{r}
        s_sub_u32 s11, s11, 1
        s_cmp_lg_u32 s11, 0
        s_cbranch_scc1 L_kb_yp{r}
        L_kb_yk{r}:
        """)
        if r == 0:
            k.tr(15)
            for rr in range(1, 6): yld(rr)
        for j in range(3):
            R = 8 + 12*r + 4*j
            e(f"ds_write_b128 v5, v[{R}:{R+3}] offset:{6144*r + 1024*j}")
        if r < 2: e("s_waitcnt lgkmcnt(0)\ns_barrier")
    e(f"""
    s_cmp_lg_u32 s6, 12
    s_cbranch_scc1 L_kb_hexit
    s_lshl_b32 s9, s22, 11
    s_add_u32 s9, s9, {WS_STATS}
    v_lshlrev_b32 v5, 5, v2
    s_waitcnt lgkmcnt(0)
    s_barrier
    s_mov_b32 s11, {SPIN}
    L_kb_sp:
    buffer_load_dwordx4 v[8:11], v5, s[12:15], s9 offen sc1
    buffer_load_dwordx4 v[12:15], v5, s[12:15], s9 offen offset:16 sc1
    s_waitcnt vmcnt(0)
    """)
    chk(range(8, 16))
    b = 8
    e(f"""
    s_cbranch_vccz L_kb_sk
    s_sub_u32 s11, s11, 1
    s_cmp_lg_u32 s11, 0
    s_cbranch_scc1 L_kb_sp
    L_kb_sk:
    v_add_f32 v20, v{b}, v{b+2}
    v_add_f32 v21, v{b+4}, v{b+6}
    v_add_f32 v20, v20, v21
    v_mul_f32 v20, 0.25, v20
    v_add_f32 v21, v{b+1}, v{b+3}
    v_add_f32 v22, v{b+5}, v{b+7}
    v_add_f32 v21, v21, v22
    v_sub_f32 v{b}, v{b}, v20
    v_sub_f32 v{b+2}, v{b+2}, v20
    v_sub_f32 v{b+4}, v{b+4}, v20
    v_sub_f32 v{b+6}, v{b+6}, v20
    v_mul_f32 v22, v{b}, v{b}
    v_fmac_f32 v22, v{b+2}, v{b+2}
    v_fmac_f32 v22, v{b+4}, v{b+4}
    v_fmac_f32 v22, v{b+6}, v{b+6}
    v_fmac_f32 v21, 0x43100000, v22
    v_mov_b32 v22, {hex(f32bits(1e-5))}
    v_fmac_f32 v22, {hex(f32bits(1.0/576))}, v21
    v_rsq_f32 v21, v22
    v_sqrt_f32 v22, v22
    v_sub_f32 v20, 0, v20
    v_lshlrev_b32 v5, 2, v2
    v_add_u32 v5, {RSB}, v5
    ds_write_b32 v5, v21
    s_mov_b32 s40, 0xffff
    """)
    m1, m2, m3, s1, s2, s3_ = 8, 9, 10, 11, 12, 13
    split3(e, 20, m1, m2, m3, 23)
    split3(e, 22, s1, s2, s3_, 23)
    def pair(d, lo, hi): e(f"v_bfi_b32 v{d}, s40, v{lo}, v{hi}")
    pair(28, m1, m2); pair(29, m1, m3); pair(30, m2, m1); pair(31, s1, s2); pair(32, s1, s3_); pair(33, s2, s1)
    e(f"""
    v_mov_b32 v34, 0
    v_mov_b32 v35, 0
    v_mov_b32 v36, 0
    v_mov_b32 v37, 0
    v_lshrrev_b32 v5, 5, v2
    v_mul_u32_u24 v5, {YTB}, v5
    v_and_b32 v6, 31, v2
    v_lshl_add_u32 v5, v6, 4, v5
    ds_write_b128 v5, v[28:31] offset:{72*512}
    ds_write_b128 v5, v[32:35] offset:{73*512}
    ds_write_b128 v5, v[34:37] offset:{74*512}
    ds_write_b128 v5, v[34:37] offset:{75*512}
    L_kb_hexit:
    s_waitcnt lgkmcnt(0)
    s_barrier
    s_endpgm
    """)
    e("L_kb_ffn:")
    e("s_cmp_ge_u32 s6, 9\ns_cbranch_scc1 L_kb_ring")
    for s in range(RD): ldA(1, s)
    e("L_kb_ring:")
    def lane_ids(m, g):
        e(f"""
        v_lshrrev_b32 v{m}, 4, v1
        v_lshrrev_b32 v{g}, 4, v{m}
        v_and_b32 v{m}, 15, v{m}
        """)
    e(f"""
    v_lshlrev_b32 v0, 9, v4
    v_lshl_add_u32 v0, v3, 4, v0
    v_add_u32 v2, {YTB}, v0
    v_lshlrev_b32 v5, 8, v4
    v_lshl_add_u32 v5, v3, 4, v5
    s_mul_i32 s9, s43, 512
    s_add_u32 s9, s9, {AXL}
    v_add_u32 v5, s9, v5
    v_cmp_gt_u32 vcc, 2, v4
    v_mov_b32 v3, {AXL + 18432}
    s_nop 0
    v_cndmask_b32 v3, v3, v5, vcc
    """)
    def rdB1(ph, s, nt):
        if ph == 1: areg, o = (0 if nt < 2 else 2), s*2048 + (nt % 2)*256
        else: areg, o = (0 if s < 9 else 2), (s % 9)*4096 + nt*256
        e(f"ds_read_b128 v[{BF+4*nt}:{BF+4*nt+3}], v{areg} offset:{o}")
    def step(ph, s, last, wa, extra_lgkm=0):
        g = (s + (19 if ph == 2 else 0)) % RD
        for nt in range(4):
            n = 3 if not last else (3 - nt)
            e(f"s_waitcnt {wa if nt == 0 else ''}lgkmcnt({n + (extra_lgkm if True else 0)})")
            for i in range(3):
                a = AF + 12*g + 4*i
                c = ACC + 16*i + 4*nt
                cc = "0" if s == 0 else f"v[{c}:{c+3}]"
                e(f"v_mfma_f32_16x16x32_bf16 v[{c}:{c+3}], v[{a}:{a+3}], v[{BF+4*nt}:{BF+4*nt+3}], {cc}")
            if not last: rdB1(ph, s+1, nt)
    e("s_barrier")
    k.tr(16)
    k.trc(13)
    for nt in range(4): rdB1(1, 0, nt)
    for s in range(19):
        wa = vm.wait_str(f'A1_{s}') + " " if s < 18 else ""
        if (s + 1) % 3 == 0 and s + 1 < 19:
            e("s_barrier")
            if FINE: k.tr(1 + (s+1)//3)
        step(1, s, s == 18, wa, extra_lgkm=0)
        if s + RD < 18: ldA(1, s + RD)
        elif s + RD == 18:
            g = 18 % RD
            e("s_waitcnt lgkmcnt(0)")
            for i in range(3):
                e(f"ds_read_b128 v[{AF+12*g+4*i}:{AF+12*g+4*i+3}], v3 offset:{512*i}")
        else: ldA(2, s + RD - 19)
    if FINE: k.tr(15)
    lane_ids(BF, BF+1)
    e(f"""
    v_lshrrev_b32 v3, 1, v{BF+1}
    v_lshlrev_b32 v3, 10, v3
    v_lshl_add_u32 v3, v{BF}, 4, v3
    v_and_b32 v{BF+2}, 1, v{BF+1}
    v_lshl_add_u32 v3, v{BF+2}, 3, v3
    s_lshl_b32 s9, s43, 11
    s_add_u32 s9, s9, {HB}
    v_add_u32 v3, s9, v3
    v_lshlrev_b32 v0, 10, v{BF+1}
    v_lshl_add_u32 v0, v{BF}, 4, v0
    v_add_u32 v0, {HB}, v0
    v_add_u32 v2, 36864, v0
    """)
    for nt in range(4):
        for i in range(3):
            c = ACC + 16*i + 4*nt
            e(f"v_cvt_pk_bf16_f32 v{c}, v{c}, v{c+1}")
            e(f"v_cvt_pk_bf16_f32 v{c+1}, v{c+2}, v{c+3}")
            e(f"v_pk_max_i16 v{c}, v{c}, 0")
            e(f"v_pk_max_i16 v{c+1}, v{c+1}, 0")
            e(f"ds_write_b64 v3, v[{c}:{c+1}] offset:{2048*i + 256*nt}")
    e(f"v_lshlrev_b32 v3, 2, v{BF}\nv_add_u32 v3, {RSB}, v3")
    e("s_waitcnt lgkmcnt(0)\ns_barrier")
    k.tr(17)
    k.trc(14)
    for nt in range(4): rdB1(2, 0, nt)
    for s in range(18):
        if P2BAR and (s + 1) % P2BAR == 0 and s + 1 < 18:
            e("s_barrier")
            if FINE: k.tr(7 + (s+1)//3)
        step(2, s, s == 17, vm.wait_str(f'A2_{s}') + " ")
        if s + RD < 18: ldA(2, s + RD)
    k.tr(18)
    RSR = AF
    for nt in range(4): e(f"ds_read_b32 v{RSR+nt}, v3 offset:{64*nt}")
    e(f"""
    s_mul_i32 s9, s6, 21846
    s_lshr_b32 s9, s9, 16
    s_mul_i32 s10, s9, 3
    s_sub_u32 s10, s6, s10
    s_mul_i32 s10, s10, 3072
    s_lshl_b32 s11, s22, 3
    s_add_u32 s9, s9, s11
    s_lshl_b32 s9, s9, 3
    s_add_u32 s9, s9, s23
    s_mul_i32 s9, s9, 9216
    s_add_u32 s9, s9, s10
    s_add_u32 s9, s9, {WS_PART}
    s_add_u32 s10, s9, {32*9216}
    s_waitcnt lgkmcnt(0)
    """)
    for i in range(3):
        for np_ in range(2):
            c = ACC + 16*i + 8*np_
            o = AF + 8 + 8*i + 4*np_
            for q in range(8): e(f"v_mul_f32 v{c+q}, v{c+q}, v{RSR + 2*np_ + q//4}")
            for q in range(4): e(f"v_cvt_pk_bf16_f32 v{o+q}, v{c+2*q}, v{c+2*q+1}")
            e(f"buffer_store_dwordx4 v[{o}:{o+3}], v1, s[12:15], s{9+np_} offen offset:{1024*i} sc1")
    e(f"""
    s_waitcnt vmcnt(0)
    """)
    k.tr(19)
    e("s_barrier")
    k.tr(20)
    e(f"""
    s_cmp_ge_u32 s6, 9
    s_cbranch_scc1 L_kb_end
    s_lshl_b32 s10, s22, 7
    s_add_u32 s10, s10, {WS_F5}
    s_cmp_lg_u32 s6, 0
    s_cbranch_scc1 L_kb_nof5
    s_lshl_b32 s9, s23, 2
    s_add_u32 s9, s9, s10
    """)
    setflag(k, 9)
    e("L_kb_nof5:")
    e("v_lshrrev_b32 v2, 4, v1\nv_and_b32 v3, 15, v2\nv_lshrrev_b32 v4, 4, v2")
    e(f"""
    s_mul_i32 s36, s21, 9
    s_add_u32 s36, s36, s6
    s_lshl_b32 s9, s36, 6
    s_add_u32 s9, s9, 11520
    v_lshlrev_b32 v6, 4, v4
    buffer_load_dwordx4 v[44:47], v6, s[12:15], s9 offen sc1
    s_lshl_b32 s9, s6, 10
    s_add_u32 s38, s9, {XS}
    v_add_u32 v5, s38, v1
    ds_read_b128 v[40:43], v5
    v_lshlrev_b32 v5, 2, v2
    """)
    poll(k, "f5", "buffer_load_dword v120, v5, s[12:15], s10 offen sc1", 1, "s_mov_b64 exec, 255")
    k.tr(21)
    e(f"""
    s_mul_i32 s10, s2, {8*9216}
    s_add_u32 s10, s10, s9
    s_add_u32 s10, s10, {WS_PART}
    """)
    for sl in range(8):
        e(f"buffer_load_dwordx4 v[{8+4*sl}:{11+4*sl}], v1, s[12:15], s10 offen sc1")
        if sl < 7: e("s_add_u32 s10, s10, 9216")
    k.srd(16, 30, 0, ACT_BYTES)
    e(f"""
    v_mul_u32_u24 v7, 1152, v3
    v_lshl_add_u32 v7, v4, 3, v7
    s_mul_i32 s37, s20, 36864
    s_lshl_b32 s9, s36, 5
    s_add_u32 s37, s37, s9
    s_add_u32 s38, s37, 18432
    """)
    for sl in range(8):
        e(f"s_waitcnt vmcnt({7-sl})")
        for d in range(4):
            w = 8 + 4*sl + d
            if sl == 0:
                e(f"v_lshlrev_b32 v{48+2*d}, 16, v{w}")
                e(f"v_and_b32 v{49+2*d}, 0xffff0000, v{w}")
            else:
                e(f"v_lshlrev_b32 v56, 16, v{w}")
                e(f"v_and_b32 v57, 0xffff0000, v{w}")
                e(f"v_add_f32 v{48+2*d}, v{48+2*d}, v56")
                e(f"v_add_f32 v{49+2*d}, v{49+2*d}, v57")
    e("s_waitcnt lgkmcnt(0)")
    for i in range(4): e(f"v_cvt_pk_bf16_f32 v{8+i}, v{48+2*i}, v{49+2*i}")
    for i in range(4):
        e(f"v_lshlrev_b32 v{48+2*i}, 16, v{8+i}")
        e(f"v_and_b32 v{49+2*i}, 0xffff0000, v{8+i}")
    for i in range(8): e(f"v_mul_f32 v{48+i}, v{48+i}, v{44+i%4}")
    for i in range(4): e(f"v_cvt_pk_bf16_f32 v{8+i}, v{48+2*i}, v{49+2*i}")
    for i in range(4):
        e(f"v_lshlrev_b32 v{48+2*i}, 16, v{8+i}")
        e(f"v_and_b32 v{49+2*i}, 0xffff0000, v{8+i}")
        e(f"v_lshlrev_b32 v{16+2*i}, 16, v{40+i}")
        e(f"v_and_b32 v{17+2*i}, 0xffff0000, v{40+i}")
    for i in range(8): e(f"v_add_f32 v{48+i}, v{48+i}, v{16+i}")
    for i in range(4): e(f"v_cvt_pk_bf16_f32 v{8+i}, v{48+2*i}, v{49+2*i}")
    e("""
    buffer_store_dwordx2 v[8:9], v7, s[16:19], s37 offen
    buffer_store_dwordx2 v[10:11], v7, s[16:19], s38 offen
    """)
    e("L_kb_end:\ns_endpgm")
    e(f"""
    L_kb_fallback:
    v_mov_b32 v{QA2+1}, 0
    v_mov_b32 v{QB2+1}, 0
    v_mov_b32 v{PA}, 0xff7fffff
    v_mov_b32 v{PA+1}, 0xff7fffff
    v_lshlrev_b32 v{PA+2}, 2, v3
    v_mov_b32 v{PB+5}, 0
    s_mov_b32 s9, {WS_KV}
    L_kb_fb_loop:
    buffer_load_dwordx4 v[{PB}:{PB+3}], v1, s[12:15], s9 offen sc1
    buffer_load_dword v{PB+4}, v{PA+2}, s[12:15], s9 offen offset:1024 sc1
    s_waitcnt vmcnt(0)
    """)
    for (S, q1, q2) in ((SA, QA1, QA2), (SB, QB1, QB2)):
        e(f"v_mfma_f32_32x32x8_bf16 v[{S}:{S+15}], v[{PB+4}:{PB+5}], v[{q2}:{q2+1}], 0")
        e(f"v_mfma_f32_32x32x16_bf16 v[{S}:{S+15}], v[{PB}:{PB+3}], v[{q1}:{q1+3}], v[{S}:{S+15}]")
    e("s_nop 15")
    for i in range(0, 16, 2): e(f"v_max3_f32 v{PA}, v{PA}, v{SA+i}, v{SA+i+1}")
    for i in range(0, 16, 2): e(f"v_max3_f32 v{PA+1}, v{PA+1}, v{SB+i}, v{SB+i+1}")
    e(f"""
    s_add_u32 s9, s9, {KVBLK}
    s_cmp_lt_u32 s9, {WS_KV + 64*KVBLK}
    s_cbranch_scc1 L_kb_fb_loop
    v_mov_b32 v{PA+2}, v{PA}
    v_mov_b32 v{PA+3}, v{PA+1}
    s_nop 1
    v_permlane32_swap_b32 v{PA}, v{PA+2}
    v_permlane32_swap_b32 v{PA+1}, v{PA+3}
    s_nop 1
    v_max_f32 v{PA}, v{PA}, v{PA+2}
    v_max_f32 v{PA+1}, v{PA+1}, v{PA+3}
    s_branch L_kb_shift
    L_kb_codeend:
    s_endpgm
    """)
```

```python
from asmlib import *
from layout import *
from back import xg_sum, SPIN
import math

SLAB = 0
MP = 156672
LS = MP + 1024
KVS = 12 * 9216
MF = LS + 2304
LF = MF + 64
HFR = 9216
T3B = HFR + 36864
MS = T3B + 2304
QST = 54272
QP = 296

def emit_front(k):
    e = k.e
    A = 8
    def traddr():
        e(f"""
        v_lshrrev_b32 v6, 2, v3
        v_lshl_add_u32 v6, v4, 3, v6
        v_mul_u32_u24 v6, 288, v6
        v_and_b32 v7, 3, v3
        v_lshl_add_u32 v6, v7, 3, v6
        s_lshl_b32 s9, s6, 5
        v_add_u32 v6, s9, v6
        v_add_u32 v7, {7*9216}, v6
        v_add_u32 v0, {14*9216}, v6
        """)
    def trs(s_):
        sl_ = s_ % 17
        ar, o = (6, sl_*9216) if sl_ < 7 else ((7, (sl_-7)*9216) if sl_ < 14 else (0, (sl_-14)*9216))
        e(f"ds_read_b64_tr_b16 v[{A+4*s_}:{A+4*s_+1}], v{ar} offset:{o}")
        e(f"ds_read_b64_tr_b16 v[{A+4*s_+2}:{A+4*s_+3}], v{ar} offset:{o+1152}")
    e(f"""
    s_cmp_ge_u32 s2, 256
    s_cbranch_scc1 L_kb_end
    s_load_dwordx2 s[4:5], s[0:1], 96
    s_load_dwordx8 s[24:31], s[0:1], 0
    s_load_dwordx2 s[32:33], s[0:1], 32
    s_load_dwordx4 s[36:39], s[0:1], 64
    s_load_dwordx2 s[40:41], s[0:1], 88
    v_lshrrev_b32 v1, 6, v0
    v_and_b32 v2, 63, v0
    v_readfirstlane_b32 s6, v1
    v_and_b32 v3, 15, v2
    v_lshrrev_b32 v4, 4, v2
    v_lshlrev_b32 v1, 4, v2
    s_and_b32 s21, s2, 3
    s_lshr_b32 s20, s2, 2
    s_waitcnt lgkmcnt(0)
    s_load_dword s34, s[4:5], {WS_EPB}
    """)
    k.srd(12, 4, 0, WS_SIZE)
    e("""
    s_cmp_ge_u32 s6, 13
    s_cbranch_scc1 L_ka_misc
    s_cmp_ge_u32 s6, 4
    s_cbranch_scc1 L_ka_prep
    """)
    e("""
    s_lshr_b32 s9, s2, 3
    s_and_b32 s10, s2, 7
    s_lshr_b32 s42, s9, 2
    s_lshl_b32 s42, s42, 5
    s_lshl_b32 s10, s10, 2
    s_add_u32 s42, s42, s10
    s_and_b32 s9, s9, 3
    s_add_u32 s42, s42, s9
    s_cmp_ge_u32 s42, 216
    s_cbranch_scc1 L_ka_b1
    s_lshl_b32 s43, s42, 5
    v_lshrrev_b32 v5, 1, v0
    v_and_b32 v6, 1, v0
    v_lshlrev_b32 v6, 4, v6
    v_mul_u32_u24 v80, 6912, v5
    v_add_u32 v80, v80, v6
    v_lshlrev_b32 v7, 1, v5
    """)
    for i in range(1, 5): e(f"v_add_u32 v{80+i}, {884736*i}, v80")
    k.srd(16, 36, 0, 1152)
    k.srd(44, 38, 0, 576*6912)
    for i in range(5): e(f"buffer_load_dwordx4 v[{16+4*i}:{19+4*i}], v{80+i}, s[44:47], s43 offen")
    for i in range(5): e(f"buffer_load_ushort v{10+i}, v7, s[16:19], 0 offen offset:{256*i}")
    for i in range(8): e(f"v_mov_b32 v{40+i}, 0")
    e(f"s_mov_b32 s9, {hex(f32bits(-1.4426950408889634))}")
    e("s_waitcnt vmcnt(0)")
    for i in range(5): e(f"v_lshlrev_b32 v{10+i}, 16, v{10+i}")
    for i in range(5): e(f"v_mul_f32 v{50+i}, s9, v{10+i}")
    for i in range(5): e(f"v_exp_f32 v{50+i}, v{50+i}")
    e("s_nop 0")
    for i in range(5): e(f"v_add_f32 v{50+i}, 1.0, v{50+i}")
    for i in range(5): e(f"v_rcp_f32 v{50+i}, v{50+i}")
    e("s_nop 0")
    for i in range(5): e(f"v_mul_f32 v{50+i}, v{50+i}, v{10+i}")
    for i in range(5): e(f"v_cvt_pk_bf16_f32 v{50+i}, v{50+i}, v{50+i}")
    for i in range(5): e(f"v_lshlrev_b32 v{50+i}, 16, v{50+i}")
    for i in range(5):
        for d in range(4):
            w = 16 + 4*i + d
            e(f"v_lshlrev_b32 v56, 16, v{w}")
            e(f"v_and_b32 v57, 0xffff0000, v{w}")
            e(f"v_fmac_f32 v{40+2*d}, v{50+i}, v56")
            e(f"v_fmac_f32 v{41+2*d}, v{50+i}, v57")
    e("s_nop 1")
    for rot in (2, 4, 8):
        for i in range(8):
            e(f"v_add_f32_dpp v{40+i}, v{40+i}, v{40+i} row_ror:{rot} row_mask:0xf bank_mask:0xf")
    e(f"""
    v_lshrrev_b32 v5, 4, v0
    v_lshlrev_b32 v5, 6, v5
    v_lshl_add_u32 v5, v6, 1, v5
    v_add_u32 v5, {MP}, v5
    v_cmp_gt_u32 vcc, 2, v3
    s_and_saveexec_b64 s[48:49], vcc
    ds_write_b128 v5, v[40:43]
    ds_write_b128 v5, v[44:47] offset:16
    s_mov_b64 exec, s[48:49]
    s_waitcnt lgkmcnt(0)
    s_mul_i32 s3, s34, 0x9E3779B1
    s_add_u32 s3, s3, 0x7F4A7C15
    s_lshl_b32 s9, s6, 2
    s_add_u32 s9, s9, {MF}
    v_mov_b32 v5, s9
    v_mov_b32 v6, s3
    ds_write_b32 v5, v6
    s_cmp_lg_u32 s6, 0
    s_cbranch_scc1 L_ka_b1
    s_mov_b32 s11, {SPIN}
    L_ka_ms:
    ds_read_b128 v[16:19], v5
    s_waitcnt lgkmcnt(0)
    v_xor_b32 v17, s3, v17
    v_xor_b32 v18, s3, v18
    v_xor_b32 v19, s3, v19
    v_or3_b32 v17, v17, v18, v19
    v_cmp_ne_u32 vcc, 0, v17
    s_cbranch_vccz L_ka_msk
    s_sub_u32 s11, s11, 1
    s_cmp_lg_u32 s11, 0
    s_cbranch_scc1 L_ka_ms
    L_ka_msk:
    """)
    e(f"v_lshlrev_b32 v5, 2, v3\nv_add_u32 v6, {MP}, v5")
    for i in range(16): e(f"ds_read_b32 v{16+i}, v6 offset:{64*i}")
    e("s_waitcnt lgkmcnt(0)")
    for st in (8, 4, 2, 1):
        for i in range(st): e(f"v_add_f32 v{16+i}, v{16+i}, v{16+i+st}")
    e(f"""
    s_mul_i32 s9, s42, 1821
    s_lshr_b32 s9, s9, 16
    s_mul_i32 s10, s9, 36
    s_sub_u32 s10, s42, s10
    s_lshl_b32 s10, s10, 4
    v_cvt_pk_bf16_f32 v16, v16, v16
    v_lshlrev_b32 v16, 16, v16
    s_cmp_eq_u32 s9, 1
    s_cbranch_scc1 L_ka_plus1
    s_cmp_eq_u32 s9, 4
    s_cbranch_scc0 L_ka_noplus1
    L_ka_plus1:
    v_add_f32 v16, 1.0, v16
    v_cvt_pk_bf16_f32 v16, v16, v16
    v_lshlrev_b32 v16, 16, v16
    L_ka_noplus1:
    s_mov_b64 exec, 0xffff
    s_cmp_ge_u32 s9, 2
    s_cbranch_scc1 L_ka_plain
    v_mov_b32 v17, s3
    v_lshlrev_b32 v6, 3, v3
    s_lshl_b32 s11, s42, 7
    s_add_u32 s11, s11, {WS_MODG}
    buffer_store_dwordx2 v[16:17], v6, s[12:15], s11 offen sc1
    s_branch L_ka_moddone
    L_ka_plain:
    s_lshl_b32 s11, s42, 6
    buffer_store_dword v16, v5, s[12:15], s11 offen sc1
    s_cmp_eq_u32 s9, 4
    s_cselect_b32 s11, 0, 1152
    s_cbranch_scc1 L_ka_cbt
    s_cmp_eq_u32 s9, 3
    s_cbranch_scc0 L_ka_moddone
    L_ka_cbt:
    s_lshl_b32 s10, s10, 1
    s_add_u32 s11, s11, s10
    s_add_u32 s11, s11, {WS_CBT}
    v_lshlrev_b32 v6, 1, v3
    buffer_store_short_d16_hi v16, v6, s[12:15], s11 offen sc1
    L_ka_moddone:
    s_mov_b64 exec, -1
    s_branch L_ka_b1
    """)
    X = 96
    e("L_ka_prep:")
    k.srd(16, 24, 0, ACT_BYTES)
    e(f"""
    s_sub_u32 s7, s6, 4
    v_mul_u32_u24 v6, 1152, v3
    v_lshl_add_u32 v6, v4, 4, v6
    s_mul_i32 s10, s20, 36864
    s_lshl_b32 s11, s7, 7
    s_add_u32 s10, s10, s11
    s_add_u32 s11, s10, 18432
    """)
    for ds in range(2):
        for nt in range(2):
            r = X + 8*ds + 4*nt
            e(f"buffer_load_dwordx4 v[{r}:{r+3}], v6, s[16:19], s{10 if nt==0 else 11} offen offset:{64*ds}")
    e("s_waitcnt vmcnt(0)")
    XF = 40
    for nt in range(2):
        for ds in range(2):
            for d in range(4):
                w = X + 8*ds + 4*nt + d; o = XF + 16*nt + 8*ds + 2*d
                e(f"v_lshlrev_b32 v{o}, 16, v{w}")
                e(f"v_and_b32 v{o+1}, 0xffff0000, v{w}")
    for nt in range(2):
        e(f"v_pk_add_f32 v[{80+2*nt}:{81+2*nt}], v[{XF+16*nt}:{XF+16*nt+1}], v[{XF+16*nt+2}:{XF+16*nt+3}]")
        for i in range(4, 16, 2): e(f"v_pk_add_f32 v[{80+2*nt}:{81+2*nt}], v[{80+2*nt}:{81+2*nt}], v[{XF+16*nt+i}:{XF+16*nt+i+1}]")
    e("v_add_f32 v84, v80, v81\nv_add_f32 v88, v82, v83")
    xg_sum(e, [84, 88], [80, 81])
    e("v_mul_f32 v84, 0x3c800000, v84\nv_mul_f32 v88, 0x3c800000, v88\nv_mov_b32 v85, v84\nv_mov_b32 v89, v88")
    for nt in range(2):
        m = 84 + 4*nt
        for i in range(0, 16, 2):
            e(f"v_pk_add_f32 v[80:81], v[{XF+16*nt+i}:{XF+16*nt+i+1}], v[{m}:{m+1}] neg_lo:[0,1] neg_hi:[0,1]")
            if i == 0: e(f"v_pk_mul_f32 v[{m+2}:{m+3}], v[80:81], v[80:81]")
            else: e(f"v_pk_fma_f32 v[{m+2}:{m+3}], v[80:81], v[80:81], v[{m+2}:{m+3}]")
        e(f"v_add_f32 v{m+1}, v{m+2}, v{m+3}")
    xg_sum(e, [85, 89], [80, 81])
    e(f"""
    s_lshl_b32 s9, s7, 8
    s_add_u32 s9, s9, {LS}
    v_lshlrev_b32 v82, 3, v3
    v_add_u32 v82, s9, v82
    ds_write_b64 v82, v[84:85]
    ds_write_b64 v82, v[88:89] offset:128
    s_waitcnt lgkmcnt(0)
    s_mul_i32 s3, s34, 0x9E3779B1
    s_add_u32 s3, s3, 0x7F4A7C15
    """)
    k.trf(1)
    e(f"""
    v_lshlrev_b32 v5, 3, v2
    s_lshl_b32 s9, s7, 9
    s_add_u32 s9, s9, {WS_MODG}
    s_add_u32 s10, s9, 4608
    s_mov_b32 s11, {SPIN}
    L_ka_mp:
    buffer_load_dwordx2 v[112:113], v5, s[12:15], s9 offen sc1
    buffer_load_dwordx2 v[114:115], v5, s[12:15], s10 offen sc1
    s_waitcnt vmcnt(0)
    v_xor_b32 v113, s3, v113
    v_xor_b32 v115, s3, v115
    v_or_b32 v113, v113, v115
    v_cmp_ne_u32 vcc, 0, v113
    s_cbranch_vccz L_ka_mk
    s_sleep 4
    s_sub_u32 s11, s11, 1
    s_cmp_lg_u32 s11, 0
    s_cbranch_scc1 L_ka_mp
    L_ka_mk:
    """)
    k.trf(2)
    e("v_lshlrev_b32 v5, 5, v4")
    for ds in range(2):
        for j in range(8):
            e(f"ds_bpermute_b32 v{80+8*ds+j}, v5, v114 offset:{128*ds + 4*j}")
    for ds in range(2):
        e(f"s_waitcnt lgkmcnt({8*(1-ds)})")
        for nt in range(2):
            r = X + 8*ds + 4*nt
            for d in range(4):
                o = XF + 16*nt + 8*ds + 2*d
                e(f"v_pk_mul_f32 v[{o}:{o+1}], v[{o}:{o+1}], v[{80+8*ds+2*d}:{81+8*ds+2*d}]")
            for d in range(4):
                o = XF + 16*nt + 8*ds + 2*d
                e(f"v_cvt_pk_bf16_f32 v{r+d}, v{o}, v{o+1}")
    e(f"""
    s_lshl_b32 s9, s7, 12
    s_add_u32 s9, s9, {HFR}
    v_add_u32 v120, s9, v1
    s_lshl_b32 s9, s7, 8
    s_add_u32 s9, s9, {T3B}
    v_lshrrev_b32 v121, 5, v2
    v_lshlrev_b32 v121, 7, v121
    v_and_b32 v122, 31, v2
    v_lshl_add_u32 v121, v122, 1, v121
    v_add_u32 v121, s9, v121
    """)
    k.trf(10)
    e("s_barrier")
    k.trf(11)
    e("s_cmp_ge_u32 s6, 9\ns_cbranch_scc1 L_ka_ptr")
    traddr()
    for s_ in range(8): trs(s_)
    e("L_ka_ptr:")
    e("s_waitcnt lgkmcnt(0)\ns_barrier")
    for ds in range(2):
        for nt in range(2):
            r = X + 8*ds + 4*nt
            e(f"ds_write_b128 v120, v[{r}:{r+3}] offset:{2048*ds + 1024*nt}")
    e("ds_write_b16_d16_hi v121, v114\nds_write_b16_d16_hi v121, v112 offset:64")
    e("s_branch L_ka_b2")
    e("""
    L_ka_misc:
    s_cmp_lg_u32 s6, 13
    s_cbranch_scc1 L_ka_dma
    """)
    e(f"""
    s_cmp_ge_u32 s21, 2
    s_cselect_b32 s16, s30, s28
    s_cselect_b32 s17, s31, s29
    s_mov_b32 s18, 20736
    s_mov_b32 s19, 0x20000
    s_and_b32 s9, s21, 1
    s_lshl_b32 s9, s9, 5
    v_lshrrev_b32 v6, 1, v2
    v_mul_u32_u24 v6, 36, v6
    v_and_b32 v7, 1, v2
    v_lshl_add_u32 v6, v7, 4, v6
    v_add_u32 v6, s9, v6
    v_lshlrev_b32 v7, 8, v4
    v_lshl_add_u32 v7, v3, 3, v7
    v_add_u32 v7, {KVS}, v7
    """)
    for c in range(18):
        e(f"s_mov_b32 m0, {KVS + 1024*c}")
        e("s_nop 0")
        e("buffer_load_dwordx4 v6, s[16:19], 0 offen lds")
        e("v_add_u32 v6, 1152, v6")
    e("s_waitcnt vmcnt(0)")
    for c in range(18):
        R = A + 4*c
        e(f"ds_read_b64_tr_b16 v[{R}:{R+1}], v7 offset:{1024*c}")
        e(f"ds_read_b64_tr_b16 v[{R+2}:{R+3}], v7 offset:{1024*c+128}")
    e("s_waitcnt lgkmcnt(0)\ns_barrier\ns_barrier")
    e("s_mul_i32 s3, s34, 0x9E3779B1\ns_add_u32 s3, s3, 0x7F4A7C15\ns_setprio 3\ns_barrier\ns_branch L_ka_gemm13")
    e("L_ka_dma:")
    k.srd(44, 26, 0, 576*1152)
    e(f"""
    s_lshr_b32 s9, s2, 3
    s_mul_i32 s9, s9, 18
    v_mul_u32_u24 v5, 21846, v2
    v_lshrrev_b32 v5, 16, v5
    v_mul_u32_u24 v6, 3, v5
    v_sub_u32 v6, v2, v6
    v_add_u32 v5, s9, v5
    v_mul_u32_u24 v5, 1152, v5
    v_lshl_add_u32 v5, v6, 7, v5
    s_mul_i32 s10, s21, 288
    s_cmp_lg_u32 s6, 14
    s_cbranch_scc1 L_ka_nt
    buffer_load_dword v30, v5, s[44:47], s10 offen
    s_branch L_ka_nt2
    L_ka_nt:
    s_lshr_b32 s9, s2, 3
    """)
    k.code_touch("L_ka_b1", "L_kb_codeend", 9, 48, 5, 30, 2)
    e("L_ka_nt2:")
    for j in range(9):
        e(f"""
        v_add_u32 v5, {64*j}, v2
        v_mul_u32_u24 v7, 3641, v5
        v_lshrrev_b32 v7, 16, v7
        v_mul_u32_u24 v6, 18, v7
        v_sub_u32 v5, v5, v6
        v_mul_u32_u24 v7, 1152, v7
        v_lshl_add_u32 v{16+j}, v5, 4, v7
        """)
    e(f"""
    s_sub_u32 s9, s6, 14
    s_mul_i32 s11, s9, 9216
    s_mul_i32 s9, s9, {32*1152}
    s_add_u32 s10, s10, s9
    """)
    for t in range(9):
        if t == 8:
            e("s_cmp_eq_u32 s6, 15\ns_cselect_b32 s11, 0, s11")
        for j in range(9):
            e("s_mov_b32 m0, s11")
            e("s_add_u32 s11, s11, 1024")
            e(f"buffer_load_dwordx4 v{16+j}, s[44:47], s10 offen lds")
        e(f"s_add_u32 s10, s10, {64*1152}\ns_add_u32 s11, s11, 9216")
        if t == 5:
            e("s_waitcnt vmcnt(18)")
            k.trf(10)
            e("s_barrier")
        if t == 7: e("s_barrier")
    e("""
    s_waitcnt vmcnt(0) lgkmcnt(0)
    s_mul_i32 s3, s34, 0x9E3779B1
    s_add_u32 s3, s3, 0x7F4A7C15
    s_branch L_ka_b2
    """)
    e("L_ka_b1:")
    e("s_waitcnt lgkmcnt(0)")
    e("s_mul_i32 s3, s34, 0x9E3779B1\ns_add_u32 s3, s3, 0x7F4A7C15")
    e("s_barrier")
    traddr()
    for s_ in range(8): trs(s_)
    e("s_waitcnt lgkmcnt(0)\ns_barrier")
    e("s_cmp_lg_u32 s6, 1\ns_cbranch_scc1 L_ka_nost")
    e(f"v_and_b32 v5, 31, v2\nv_lshlrev_b32 v5, 3, v5\nv_add_u32 v80, {LS}, v5")
    for w in range(9): e(f"ds_read_b64 v[{84+2*w}:{85+2*w}], v80 offset:{256*w}")
    e("s_waitcnt lgkmcnt(0)")
    b_ = 84
    e(f"v_add_f32 v80, v{b_}, v{b_+2}")
    for w in range(2, 9): e(f"v_add_f32 v80, v80, v{b_+2*w}")
    e(f"v_mul_f32 v80, {hex(f32bits(1.0/9))}, v80")
    e(f"v_add_f32 v81, v{b_+1}, v{b_+3}")
    for w in range(2, 9): e(f"v_add_f32 v81, v81, v{b_+1+2*w}")
    e("v_mov_b32 v83, 0")
    for w in range(9):
        e(f"v_sub_f32 v82, v{b_+2*w}, v80")
        e(f"v_fmac_f32 v83, v82, v82")
    e(f"""
    v_fmac_f32 v81, 0x42800000, v83
    v_mov_b32 v82, {hex(f32bits(1e-5))}
    v_fmac_f32 v82, {hex(f32bits(1.0/576))}, v81
    v_rsq_f32 v82, v82
    s_nop 0
    v_mul_f32 v83, v80, v82
    v_sub_f32 v83, 0, v83
    v_add_u32 v5, {LF}, v5
    ds_write_b64 v5, v[82:83]
    L_ka_nost:
    L_ka_b2:
    s_waitcnt lgkmcnt(0)
    """)
    k.trf(3)
    e("s_barrier")
    k.trf(4)
    e("""
    s_cmp_lt_u32 s6, 9
    s_cbranch_scc1 L_ka_g0
    """)
    e(f"""
    s_cmp_lg_u32 s6, 9
    s_cbranch_scc1 L_ka_nop
    v_mov_b32 v80, -1
    v_mov_b32 v81, -1
    v_mov_b32 v82, -1
    v_mov_b32 v83, -1
    s_mul_i32 s10, s2, 9216
    s_add_u32 s11, s10, {WS_YF}
    s_add_u32 s10, s10, {WS_O}
    """)
    for c in range(9):
        if c and c % 4 == 0: e("s_add_u32 s10, s10, 4096\ns_add_u32 s11, s11, 4096")
        e(f"buffer_store_dwordx4 v[80:83], v1, s[12:15], s10 offen offset:{1024*(c%4)} sc1")
        e(f"buffer_store_dwordx4 v[80:83], v1, s[12:15], s11 offen offset:{1024*(c%4)} sc1")
    e(f"""
    s_lshl_b32 s10, s2, 8
    s_add_u32 s10, s10, {WS_STATS}
    s_mov_b64 exec, 0xffff
    buffer_store_dwordx4 v[80:83], v1, s[12:15], s10 offen sc1
    s_mov_b64 exec, -1
    L_ka_nop:
    s_min_u32 s52, s2, 215
    s_mul_i32 s9, s52, 5462
    s_lshr_b32 s9, s9, 16
    s_mul_i32 s10, s9, 12
    s_sub_u32 s10, s52, s10
    s_mul_i32 s10, s10, 3
    v_mul_u32_u24 v5, 9216, v4
    v_lshl_add_u32 v5, v3, 1, v5
    s_mul_i32 s11, s9, {32*1152}
    s_lshl_b32 s42, s10, 5
    s_add_u32 s11, s11, s42
    s_add_u32 s42, s11, 4608
    s_mul_i32 s43, s10, 18
    s_add_u32 s43, s43, s9
    s_lshl_b32 s43, s43, 10
    s_add_u32 s43, s43, {WS_WO}
    """)
    k.srd(16, 32, 0, 576*1152)
    e("s_cmp_lg_u32 s6, 10\ns_cbranch_scc1 L_ka_now")
    for f in range(3):
        for j in range(8):
            e(f"buffer_load_ushort v{80+8*f+j}, v5, s[16:19], s{11 if j < 4 else 42} offen offset:{1152*(j%4) + 32*f}")
    e("L_ka_now:")
    e("s_cmp_lg_u32 s6, 10\ns_cbranch_scc1 L_ka_now2")
    e("s_waitcnt vmcnt(0)")
    for f in range(3):
        for x in range(4): e(f"v_lshl_or_b32 v{104+4*f+x}, v{80+8*f+2*x+1}, 16, v{80+8*f+2*x}")
        e(f"buffer_store_dwordx4 v[{104+4*f}:{107+4*f}], v1, s[12:15], s43 offen sc1")
        if f < 2: e("s_add_u32 s43, s43, 18432")
    e("L_ka_now2:")
    e("s_branch L_ka_bq")
    BR = 80
    def gemm(with_tr):
        e(f"""
        v_add_u32 v5, {HFR}, v1
        v_and_b32 v2, 1, v3
        v_lshlrev_b32 v2, 6, v2
        v_lshl_add_u32 v2, v4, 4, v2
        v_add_u32 v2, {T3B}, v2
        """)
        ops = []
        def rd(s):
            b = BR + 12*(s % 3)
            e(f"ds_read_b128 v[{b}:{b+3}], v5 offset:{2048*s}")
            e(f"ds_read_b128 v[{b+4}:{b+7}], v5 offset:{2048*s+1024}")
            e(f"ds_read_b128 v[{b+8}:{b+11}], v2 offset:{128*s}")
            ops.extend([f"B{s}"] * 3)
        for s in range(2): rd(s)
        for s in range(18):
            if s + 2 < 18: rd(s + 2)
            if with_tr and s < 5:
                trs(8 + 2*s); trs(9 + 2*s); ops.extend(["T"] * 4)
            last = max(i for i, t in enumerate(ops) if t == f"B{s}")
            n = len(ops) - 1 - last
            e(f"s_waitcnt lgkmcnt({min(n, 15)})")
            b = BR + 12*(s % 3)
            for t in range(3):
                c = 116 + 4*t
                cc = "0" if s == 0 else f"v[{c}:{c+3}]"
                e(f"v_mfma_f32_16x16x32_bf16 v[{c}:{c+3}], v[{A+4*s}:{A+4*s+3}], v[{b+4*t}:{b+4*t+3}], {cc}")
    e("L_ka_gemm13:")
    gemm(False)
    e("s_branch L_ka_gx")
    e("L_ka_g0:")
    gemm(True)
    e("L_ka_gx:")
    e(f"v_lshrrev_b32 v2, 4, v1\nv_lshlrev_b32 v7, 3, v3\nv_add_u32 v7, {LF}, v7")
    e("ds_read_b64 v[8:9], v7\nds_read_b64 v[10:11], v7 offset:128\ns_nop 7")
    for r in range(4):
        e(f"v_mov_b32_dpp v{12+r}, v{124+r} row_newbcast:0 row_mask:0xf bank_mask:0xf")
        e(f"v_mov_b32_dpp v{16+r}, v{124+r} row_newbcast:1 row_mask:0xf bank_mask:0xf")
    e("s_waitcnt lgkmcnt(0)")
    for nt in range(2):
        for r in range(4): e(f"v_fma_f32 v{20+r}, v{12+r}, v{9+2*nt}, v{16+r}")
        for r in range(4): e(f"v_fma_f32 v{116+4*nt+r}, v{116+4*nt+r}, v{8+2*nt}, v{20+r}")
    k.trf(5)
    cs = math.log2(math.e) / math.sqrt(DH)
    C = 116
    e(f"""
    s_cmp_eq_u32 s6, 13
    s_cbranch_scc1 L_ka_kv
    s_mov_b32 s9, {hex(f32bits(cs))}
    v_mul_u32_u24 v6, {QP}, v3
    v_lshl_add_u32 v6, v4, 3, v6
    s_lshl_b32 s11, s6, 5
    s_add_u32 s11, s11, {QST}
    v_add_u32 v6, s11, v6
    """)
    for i in range(8): e(f"v_mul_f32 v{C+i}, s9, v{C+i}")
    for i in range(4): e(f"v_cvt_pk_bf16_f32 v{8+i}, v{C+2*i}, v{C+2*i+1}")
    e(f"""
    ds_write_b64 v6, v[8:9]
    ds_write_b64 v6, v[10:11] offset:{16*QP}
    s_branch L_ka_bq
    L_ka_kv:
    s_mul_i32 s10, s20, {KVBLK}
    s_add_u32 s10, s10, {WS_KV}
    v_mov_b32 v24, 0
    """)
    for i in range(4): e(f"v_cvt_pk_bf16_f32 v{8+i}, v{C+2*i}, v{C+2*i+1}")
    e("""
    s_cmp_ge_u32 s21, 2
    s_cbranch_scc1 L_ka_v
    """)
    for i in range(4):
        e(f"v_lshlrev_b32 v{16+2*i}, 16, v{8+i}")
        e(f"v_and_b32 v{17+2*i}, 0xffff0000, v{8+i}")
    e("""
    s_cmp_eq_u32 s21, 1
    s_cbranch_scc1 L_ka_k2
    v_lshrrev_b32 v6, 1, v4
    v_lshlrev_b32 v6, 9, v6
    v_lshl_add_u32 v6, v3, 4, v6
    v_and_b32 v7, 1, v4
    v_lshl_add_u32 v6, v7, 3, v6
    buffer_store_dwordx2 v[8:9], v6, s[12:15], s10 offen sc1
    buffer_store_dwordx2 v[10:11], v6, s[12:15], s10 offen offset:256 sc1
    v_mul_f32 v24, v16, v16
    v_mul_f32 v25, v20, v20
    v_fmac_f32 v24, v17, v17
    v_fmac_f32 v25, v21, v21
    v_fmac_f32 v24, v18, v18
    v_fmac_f32 v25, v22, v22
    v_fmac_f32 v24, v19, v19
    v_fmac_f32 v25, v23, v23
    """)
    xg_sum(e, [24, 25], [26, 27])
    e("""
    s_branch L_ka_norm
    L_ka_k2:
    v_lshlrev_b32 v6, 2, v3
    v_mul_f32 v24, v16, v16
    v_mul_f32 v25, v20, v20
    v_fmac_f32 v24, v17, v17
    v_fmac_f32 v25, v21, v21
    s_mov_b64 exec, 0xffff
    buffer_store_dword v8, v6, s[12:15], s10 offen offset:1024 sc1
    buffer_store_dword v10, v6, s[12:15], s10 offen offset:1088 sc1
    s_mov_b64 exec, -1
    L_ka_norm:
    v_max_f32 v24, v24, v25
    """)
    for rot in (1, 2, 4, 8):
        e("s_nop 1")
        e(f"v_max_f32_dpp v24, v24, v24 row_ror:{rot} row_mask:0xf bank_mask:0xf")
    e("""
    s_branch L_ka_pub
    L_ka_v:
    v_lshrrev_b32 v6, 2, v3
    v_and_b32 v6, 1, v6
    v_mul_u32_u24 v6, 304, v6
    v_lshrrev_b32 v7, 3, v3
    v_lshl_add_u32 v6, v7, 3, v6
    v_and_b32 v7, 3, v3
    v_lshl_add_u32 v6, v7, 1, v6
    v_lshl_add_u32 v6, v4, 6, v6
    s_add_u32 s10, s10, 1152
    s_cmp_eq_u32 s21, 3
    s_cbranch_scc1 L_ka_v2
    """)
    for nt in range(2):
        for r in range(4):
            op = "buffer_store_short" + ("_d16_hi" if r & 1 else "")
            e(f"{op} v{8+2*nt+r//2}, v6, s[12:15], s10 offen offset:{608*nt + 16*r} sc1")
    e("""
    s_branch L_ka_pub
    L_ka_v2:
    v_mov_b32 v9, 0x3f80
    s_mov_b64 exec, 0xffff
    """)
    for nt in range(2):
        e(f"buffer_store_short v{8+2*nt}, v6, s[12:15], s10 offen offset:{608*nt + 256} sc1")
        e(f"buffer_store_short_d16_hi v{8+2*nt}, v6, s[12:15], s10 offen offset:{608*nt + 272} sc1")
        e(f"buffer_store_short v9, v6, s[12:15], s10 offen offset:{608*nt + 288} sc1")
    e(f"""
    L_ka_pub:
    s_mov_b64 exec, 1
    v_mov_b32 v25, v24
    v_mov_b32 v24, s3
    v_mov_b32 v6, 0
    s_lshl_b32 s11, s20, 7
    s_lshl_b32 s9, s21, 3
    s_add_u32 s11, s11, s9
    s_add_u32 s11, s11, {WS_F3}
    s_waitcnt vmcnt(0)
    buffer_store_dwordx2 v[24:25], v6, s[12:15], s11 offen sc1
    s_mov_b64 exec, -1
    s_setprio 0
    s_barrier
    s_branch L_ka_bq2
    L_ka_bq:
    s_waitcnt vmcnt(0) lgkmcnt(0)
    """)
    k.trf(6)
    e("s_barrier")
    e(f"""
    s_cmp_lg_u32 s6, 12
    s_cbranch_scc1 L_ka_bq2
    s_lshl_b32 s11, s20, 7
    s_lshl_b32 s9, s21, 2
    s_add_u32 s11, s11, s9
    s_add_u32 s11, s11, {WS_F2B}
    v_mov_b32 v24, s3
    v_mov_b32 v6, 0
    s_mov_b64 exec, 1
    buffer_store_dword v24, v6, s[12:15], s11 offen sc1
    s_mov_b64 exec, -1
    L_ka_bq2:
    """)
    k.trf(7)
```

```python
import os
from asmlib import *
import front, back
NAME = "adaLN_cond__grouped_kv_mqa__dense_activation_relu__prompt_kernel"
def kernels(trace=False):
    k = Kernel(NAME, grid=256, block=1024, lds=163840, vgpr=128, sgpr=100)
    k.trace = (trace == "back"); k.trace_front = (trace == "front")
    front.emit_front(k)
    back.emit_back(k, front.QST, front.QP)
    return [k]
```

```python
T=2048; D=576; H=32; DH=18; F=4608
WS_MOD=0x0; WS_CBT=0x4000; WS_KNORM=0x5000
WS_UT=0x8000
WS_STATS=0x30000
WS_SYNC=0x40000
WS_EPB=WS_SYNC
WS_EPA=WS_SYNC+0x1000
WS_F3=WS_SYNC+0x2000
WS_FS=WS_SYNC+0x4000
WS_F4=WS_SYNC+0x6000
WS_F5=WS_SYNC+0x8000
WS_F1=WS_SYNC+0xA000
WS_FS2=WS_SYNC+0x14000
WS_WQKV=0x100000; WS_WO=0x200000; WS_W1F=0x400000; WS_W2F=0xA00000
WS_N1=0x1000000; WS_Q=0x1300000; WS_KV=0x1600000; WS_O=0x1700000
WS_X2=0x1A00000; WS_YF=0x1D00000; WS_PART=0x2000000
WS_SIZE=0x4000000
ACT_BYTES=T*D*2
KVBLK=2368
KV_BYTES=148*1024
WS_AX=0x300000
WS_MODG=WS_SYNC+0x18000
WS_F2B=WS_SYNC+0x1C000
```

```python
import sys
sys.path.insert(0, "gen")
from asmlib import *
import gen_list
out = "adaLN_cond__grouped_kv_mqa__dense_activation_relu__prompt.s"
emit_file(gen_list.kernels(), out)
for mode in ("front", "back"):
    ks = gen_list.kernels(trace=mode)
    for i, k in enumerate(ks): k.apply_trace(i)
    emit_file(ks, f"trace_{mode}.s")
print("wrote", out)
```

```python
from asmlib import *
from layout import *
import math

QA1, QA2, QB1, QB2 = 8, 12, 14, 18
KB = [(20, 24), (26, 30)]
VB = [32, 40]
SA, SB, PA, PB, OA, OB = 48, 64, 80, 88, 96, 112
AK1, AK2, AV = 5, 6, 7
NIT = 16
STRIDE = KVBLK
SEG = 16
QREG = 16 * KVBLK
QSH = 64 * KVBLK
XS = QSH; RSB = QSH + 9216; STX = RSB + 256; CNT = STX + 2304
OFB = 3 * 16 * KVBLK
YTB = 76 * 512
HB = 2 * YTB
AXL = HB
SPIN = 0x40000
import os
P2BAR = 3
PB_SYNC = int(os.environ.get('PBS', '5'))
PA_BARS = eval(os.environ.get('PAB', '(3, 7, 11, 15)'))
QBAR = True
FS2E = int(os.environ.get('FS2E', '0'))
HSLEEP = int(os.environ.get("HSL", "80"))
import os
FINE = bool(os.environ.get('FINE'))
VMASK = int(os.environ.get('VMASK', '1'))
PROBE = int(os.environ.get('PROBE', '1'))

def poll(k, name, load, ncmp, execmask=None, sleep=0, tries=None):
    e = k.e
    lp = k.label(name); dn = k.label(name + "d")
    if execmask: e(execmask)
    e(f"s_mov_b32 s11, {tries or SPIN}")
    e(f"{lp}:")
    e(load)
    e("s_waitcnt vmcnt(0)")
    if ncmp == 1:
        e("v_cmp_ne_u32 vcc, s3, v120")
    else:
        for i in range(ncmp): e(f"v_xor_b32 v{120+i}, s3, v{120+i}")
        e("v_or3_b32 v120, v120, v121, v122")
        e("v_or_b32 v120, v120, v123")
        e("v_cmp_ne_u32 vcc, 0, v120")
    e(f"""
    s_cbranch_vccz {dn}
    {"s_sleep " + str(sleep) if sleep else ""}
    s_sub_u32 s11, s11, 1
    s_cmp_lg_u32 s11, 0
    s_cbranch_scc1 {lp}
    {dn}:
    """)
    if execmask: e("s_mov_b64 exec, -1")

def setflag(k, soff):
    k.e(f"""
    v_mov_b32 v120, s3
    v_mov_b32 v121, 0
    s_mov_b64 exec, 1
    buffer_store_dword v120, v121, s[12:15], s{soff} offen sc1
    s_mov_b64 exec, -1
    """)

def chkp(e, regs, t):
    r = list(regs)
    e(f"v_max_u32 v{t}, v{r[0]}, v{r[1]}")
    for i in range(2, len(r), 2):
        e(f"v_max3_u32 v{t}, v{t}, v{r[i]}, v{r[i+1]}")
    e(f"v_cmp_eq_u32 vcc, -1, v{t}")

def split3(e, x, p1, p2, p3, t):
    e(f"""
    v_cvt_pk_bf16_f32 v{p1}, v{x}, v{x}
    v_lshlrev_b32 v{t}, 16, v{p1}
    v_sub_f32 v{x}, v{x}, v{t}
    v_cvt_pk_bf16_f32 v{p2}, v{x}, v{x}
    v_lshlrev_b32 v{t}, 16, v{p2}
    v_sub_f32 v{x}, v{x}, v{t}
    v_cvt_pk_bf16_f32 v{p3}, v{x}, v{x}
    """)

def xg_sum(e, regs, tmp):
    for op in ("v_permlane16_swap_b32", "v_permlane32_swap_b32"):
        for r, t in zip(regs, tmp): e(f"v_mov_b32 v{t}, v{r}")
        e("s_nop 1")
        for r, t in zip(regs, tmp): e(f"{op} v{r}, v{t}")
        e("s_nop 1")
        for r, t in zip(regs, tmp): e(f"v_add_f32 v{r}, v{r}, v{t}")

def emit_back(k, QST, QP):
    e = k.e
    T0 = SA
    KNL = QST - 16
    e(f"""
    s_load_dwordx4 s[24:27], s[0:1], 48
    s_load_dwordx2 s[28:29], s[0:1], 0
    s_load_dwordx2 s[30:31], s[0:1], 80
    s_mov_b32 s33, s34
    v_and_b32 v3, 31, v2
    v_lshrrev_b32 v4, 5, v2
    s_and_b32 s7, s6, 3
    s_lshr_b32 s8, s6, 2
    s_lshr_b32 s9, s2, 3
    s_and_b32 s23, s2, 3
    s_lshl_b32 s23, s23, 1
    s_and_b32 s10, s9, 1
    s_add_u32 s23, s23, s10
    s_lshr_b32 s55, s9, 1
    s_and_b32 s22, s2, 4
    s_lshl_b32 s22, s22, 2
    s_add_u32 s22, s22, s55
    """)
    e(f"""
    s_cmp_lg_u32 s6, 4
    s_cbranch_scc1 L_kb_nopoll
    v_lshlrev_b32 v5, 7, v2
    s_mov_b32 s10, {WS_F3}
    s_mov_b32 s11, {SPIN}
    L_kb_kvp:
    buffer_load_dwordx4 v[8:11], v5, s[12:15], s10 offen sc1
    buffer_load_dwordx4 v[12:15], v5, s[12:15], s10 offen offset:16 sc1
    s_waitcnt vmcnt(0)
    v_xor_b32 v8, s3, v8
    v_xor_b32 v10, s3, v10
    v_xor_b32 v12, s3, v12
    v_xor_b32 v14, s3, v14
    v_or3_b32 v8, v8, v10, v12
    v_or_b32 v8, v8, v14
    v_cmp_ne_u32 vcc, 0, v8
    s_cbranch_vccz L_kb_kvk
    s_sub_u32 s11, s11, 1
    s_cmp_lg_u32 s11, 0
    s_cbranch_scc1 L_kb_kvp
    L_kb_kvk:
    """)
    for rot in (1, 2, 4, 8):
        e(f"v_max_f32_dpp v9, v9, v9 row_ror:{rot} row_mask:0xf bank_mask:0xf")
        e(f"v_max_f32_dpp v11, v11, v11 row_ror:{rot} row_mask:0xf bank_mask:0xf")
        e("s_nop 0")
    for op in ("v_permlane16_swap_b32", "v_permlane32_swap_b32"):
        e(f"""
        v_mov_b32 v12, v9
        v_mov_b32 v13, v11
        s_nop 1
        {op} v9, v12
        {op} v11, v13
        s_nop 1
        v_max_f32 v9, v9, v12
        v_max_f32 v11, v11, v13
        """)
    e(f"""
    v_add_f32 v9, v9, v11
    v_mov_b32 v5, {QST - 16}
    ds_write_b32 v5, v9
    L_kb_nopoll:
    """)
    KN0, KN1 = T0+4, T0+5
    t0, t1, nA, nB = T0+6, T0+7, T0+8, T0+9
    e(f"""
    s_cmp_ge_u32 s8, 1
    s_cbranch_scc1 L_kb_noq
    v_mul_u32_u24 v{T0}, {QP}, v3
    s_mul_i32 s9, s7, 72
    s_add_u32 s9, s9, {QST}
    v_add_u32 v{T0}, s9, v{T0}
    v_lshl_add_u32 v{T0+1}, v4, 4, v{T0}
    ds_read2_b32 v[{QA1}:{QA1+1}], v{T0+1} offset0:0 offset1:1
    ds_read2_b32 v[{QA1+2}:{QA1+3}], v{T0+1} offset0:2 offset1:3
    ds_read_b32 v{QA2}, v{T0} offset:32
    ds_read2_b32 v[{QB1}:{QB1+1}], v{T0+1} offset0:9 offset1:10
    ds_read2_b32 v[{QB1+2}:{QB1+3}], v{T0+1} offset0:11 offset1:12
    ds_read_b32 v{QB2}, v{T0} offset:68
    s_waitcnt lgkmcnt(0)
    v_cmp_eq_u32 vcc, 0, v4
    s_nop 1
    v_cndmask_b32 v{QA2}, 0, v{QA2}, vcc
    v_cndmask_b32 v{QB2}, 0, v{QB2}, vcc
    """)
    for (q1, q2, n) in ((QA1, QA2, nA), (QB1, QB2, nB)):
        e(f"v_mov_b32 v{n}, 0")
        for r in [q1, q1+1, q1+2, q1+3, q2]:
            e(f"v_lshlrev_b32 v{t0}, 16, v{r}")
            e(f"v_and_b32 v{t1}, 0xffff0000, v{r}")
            e(f"v_fmac_f32 v{n}, v{t0}, v{t0}")
            e(f"v_fmac_f32 v{n}, v{t1}, v{t1}")
    e(f"""
    v_mov_b32 v{t0}, v{nA}
    v_mov_b32 v{t1}, v{nB}
    s_nop 1
    v_permlane32_swap_b32 v{nA}, v{t0}
    v_permlane32_swap_b32 v{nB}, v{t1}
    s_nop 1
    v_add_f32 v{nA}, v{nA}, v{t0}
    v_add_f32 v{nB}, v{nB}, v{t1}
    L_kb_noq:
    s_waitcnt lgkmcnt(0)
    """)
    k.trf(8)
    e("s_barrier")
    k.trf(9)
    e("""
    s_cmp_lt_u32 s6, 4
    s_cbranch_scc1 L_kb_nodma0
    s_cmp_eq_u32 s6, 9
    s_cbranch_scc1 L_kb_nodma0
    s_sub_u32 s50, s6, 4
    s_min_u32 s50, s50, 9
    s_cmp_eq_u32 s6, 14
    s_cselect_b32 s50, 5, s50
    s_lshl_b32 s50, s50, 10
    """)
    for qq in range(4):
        e(f"s_add_u32 s11, s50, {qq*QREG}")
        e("s_mov_b32 m0, s11")
        e(f"s_add_u32 s9, s11, {WS_KV}")
        e("buffer_load_dwordx4 v1, s[12:15], s9 offen sc1 lds")
    e("L_kb_nodma0:")
    e("s_mov_b32 s60, 0x7ffff\ns_mov_b32 s61, 0x7ffff")
    for r in range(32, 48): e(f"v_mov_b32 v{r}, 0")
    e(f"""
    s_mul_i32 s11, s8, {QREG}
    v_add_u32 v{AK1}, s11, v1
    v_lshlrev_b32 v{AK2}, 2, v3
    s_add_u32 s9, s11, 1024
    v_add_u32 v{AK2}, s9, v{AK2}
    v_mov_b32 v{AV}, 4
    v_subrev_u32 v{t0}, 20, v3
    v_cmp_gt_u32 vcc, 8, v{t0}
    s_nop 1
    v_cndmask_b32 v{AV}, v{AV}, 0, vcc
    v_cmp_gt_u32 vcc, 19, v3
    s_nop 1
    v_cndmask_b32 v{AV}, v{AV}, v3, vcc
    v_lshlrev_b32 v{AV}, 4, v{AV}
    v_mul_u32_u24 v{t0}, 304, v4
    s_add_u32 s9, s11, 1152
    v_add3_u32 v{AV}, v{AV}, v{t0}, s9
    v_mov_b32 v{KB[0][1]+1}, 0x3f803f80
    v_mov_b32 v{KB[1][1]+1}, 0x3f803f80
    s_mul_i32 s9, s7, 3072
    s_add_u32 s9, s9, {QSH}
    v_add_u32 v{PB+7}, s9, v1
    s_mul_i32 s36, s2, 21846
    s_lshr_b32 s36, s36, 16
    s_mul_i32 s37, s36, 3
    s_sub_u32 s37, s2, s37
    s_lshl_b32 s36, s36, 2
    s_add_u32 s36, s36, s7
    s_mul_i32 s38, s37, 6
    s_mul_i32 s44, s38, {32*9216}
    s_lshl_b32 s45, s36, 5
    s_add_u32 s44, s44, s45
    s_mul_i32 s46, s36, 18
    s_add_u32 s46, s46, s38
    s_lshl_b32 s46, s46, 10
    s_add_u32 s46, s46, {WS_W1F}
    s_mul_i32 s50, s2, 7282
    s_lshr_b32 s50, s50, 16
    s_mul_i32 s51, s50, 9
    s_sub_u32 s51, s2, s51
    s_lshl_b32 s51, s51, 2
    s_add_u32 s51, s51, s7
    s_mul_i32 s52, s50, 21846
    s_lshr_b32 s52, s52, 16
    s_mul_i32 s53, s52, 3
    s_sub_u32 s53, s50, s53
    s_mul_i32 s53, s53, 6
    s_mul_i32 s49, s52, 36
    s_add_u32 s49, s49, s51
    s_mul_i32 s49, s49, 18
    s_add_u32 s49, s49, s53
    s_lshl_b32 s49, s49, 10
    s_add_u32 s49, s49, {WS_W2F}
    s_mul_i32 s48, s50, {6*32*1152}
    s_lshl_b32 s45, s51, 5
    s_add_u32 s48, s48, s45
    s_mov_b32 s16, s24
    s_mov_b32 s17, s25
    s_mov_b32 s18, 5308416
    s_mov_b32 s19, 0x20000
    s_mov_b32 s56, s26
    s_mov_b32 s57, s27
    s_mov_b32 s58, 5308416
    s_mov_b32 s59, 0x20000
    s_cmp_ge_u32 s8, 1
    s_cbranch_scc1 L_kb_qdone
    v_mov_b32 v{KN1}, {KNL}
    ds_read_b32 v{KN0}, v{KN1}
    s_waitcnt lgkmcnt(0)
    v_mul_f32 v{nA}, v{nA}, v{KN0}
    v_mul_f32 v{nB}, v{nB}, v{KN0}
    v_sqrt_f32 v{PA}, v{nA}
    v_sqrt_f32 v{PA+1}, v{nB}
    s_nop 0
    v_max_f32 v{t0}, v{PA}, v{PA+1}
    v_mov_b32 v{t1}, 0x42700000
    v_cmp_nle_f32 vcc, v{t0}, v{t1}
    s_cbranch_vccnz L_kb_fallback
    L_kb_shift:
    """)
    for (q2, n) in ((QA2, PA), (QB2, PA+1)):
        e(f"""
        v_sub_f32 v{n}, 0, v{n}
        v_cvt_pk_bf16_f32 v{PA+2}, v{n}, v{n}
        v_lshlrev_b32 v{PA+2}, 16, v{PA+2}
        v_sub_f32 v{n}, v{n}, v{PA+2}
        v_cvt_pk_bf16_f32 v{PA+3}, v{n}, v{n}
        v_lshlrev_b32 v{PA+3}, 16, v{PA+3}
        v_sub_f32 v{n}, v{n}, v{PA+3}
        v_cvt_pk_bf16_f32 v{PA+2}, v{PA+2}, v{PA+3}
        v_cvt_pk_bf16_f32 v{PA+3}, v{n}, 0
        v_cmp_eq_u32 vcc, 0, v4
        s_nop 1
        v_cndmask_b32 v{q2+1}, v{PA+3}, v{PA+2}, vcc
        """)
    def off(i): return (i % SEG) * STRIDE
    def rdK(i):
        k1, k2 = KB[i % 2]
        return [f"ds_read_b128 v[{k1}:{k1+3}], v{AK1} offset:{off(i)}", f"ds_read_b32 v{k2}, v{AK2} offset:{off(i)}"]
    def rdV(i):
        v = VB[i % 2]
        if not VMASK: return [f"ds_read_b128 v[{v}:{v+3}], v{AV} offset:{off(i)}", f"ds_read_b128 v[{v+4}:{v+7}], v{AV} offset:{off(i)+608}"]
        return [f"s_mov_b64 exec, s[60:61]\nds_read_b128 v[{v}:{v+3}], v{AV} offset:{off(i)}\nds_read_b128 v[{v+4}:{v+7}], v{AV} offset:{off(i)+608}\ns_mov_b64 exec, -1"]
    def bumpK(): return [f"v_add_u32 v{AK1}, {SEG*STRIDE}, v{AK1}", f"v_add_u32 v{AK2}, {SEG*STRIDE}, v{AK2}"]
    def bumpV(): return [f"v_add_u32 v{AV}, {SEG*STRIDE}, v{AV}"]
    def QK(S, q1, q2, i):
        k1, k2 = KB[i % 2]
        return [f"v_mfma_f32_32x32x8_bf16 v[{S}:{S+15}], v[{k2}:{k2+1}], v[{q2}:{q2+1}], 0",
                f"v_mfma_f32_32x32x16_bf16 v[{S}:{S+15}], v[{k1}:{k1+3}], v[{q1}:{q1+3}], v[{S}:{S+15}]"]
    def PV(O, P, i):
        v = VB[i % 2]
        return [f"v_mfma_f32_32x32x16_bf16 v[{O}:{O+15}], v[{v}:{v+3}], v[{P}:{P+3}], v[{O}:{O+15}]",
                f"v_mfma_f32_32x32x16_bf16 v[{O}:{O+15}], v[{v+4}:{v+7}], v[{P+4}:{P+7}], v[{O}:{O+15}]"]
    def phase(mf, S, P, extra=()):
        extra = list(extra)
        mf = list(mf) + [None] * (4 - len(mf))
        for gidx in range(4):
            if mf[gidx]: e(mf[gidx])
            elif gidx > 0: e("s_nop 0")
            if gidx > 0:
                for c in range(2):
                    a = 4*(gidx-1) + 2*c
                    e(f"v_cvt_pk_bf16_f32 v{P + a//2}, v{S+a}, v{S+a+1}")
            for x in range(4):
                e(f"v_exp_f32 v{S+4*gidx+x}, v{S+4*gidx+x}")
            if gidx < 3:
                n = (len(extra) + (2 - gidx)) // (3 - gidx)
                for _ in range(n): e(extra.pop(0))
            else:
                e(f"v_cvt_pk_bf16_f32 v{P+6}, v{S+12}, v{S+13}")
                e(f"v_cvt_pk_bf16_f32 v{P+7}, v{S+14}, v{S+15}")
    e(f"""
    ds_write_b128 v{PB+7}, v[8:11]
    ds_write_b128 v{PB+7}, v[12:15] offset:1024
    ds_write_b128 v{PB+7}, v[16:19] offset:2048
    L_kb_qdone:
    """)
    e("s_cmp_eq_u32 s6, 9\ns_cbranch_scc1 L_kb_b0\ns_waitcnt vmcnt(0)\nL_kb_b0:\ns_waitcnt lgkmcnt(0)\ns_barrier")
    k.tr(1)
    k.trc(3)
    for x in rdK(0) + rdV(0): e(x)
    e(f"""
    ds_read_b128 v[8:11], v{PB+7}
    ds_read_b128 v[12:15], v{PB+7} offset:1024
    ds_read_b128 v[16:19], v{PB+7} offset:2048
    s_mul_i32 s47, s8, {QREG}
    s_mul_i32 s9, s7, 9472
    s_add_u32 s47, s47, s9
    s_cmp_lt_u32 s6, 8
    s_cbranch_scc1 L_kb_go
    """)
    for qq in range(4):
        for r in range(4):
            e(f"s_add_u32 s11, s6, {2 + 8*r}")
            if r == 3: e("s_min_u32 s11, s11, 36")
            e("s_lshl_b32 s11, s11, 10")
            e(f"s_add_u32 s11, s11, {qq*QREG}")
            e("s_mov_b32 m0, s11")
            e(f"s_add_u32 s9, s11, {WS_KV}")
            e("buffer_load_dwordx4 v1, s[12:15], s9 offen sc1 lds")
    e("L_kb_go:")
    e(f"v_mov_b32 v{KB[0][1]+1}, 0x3f803f80\nv_mov_b32 v{KB[1][1]+1}, 0x3f803f80")
    for i in range(16):
        e(f"v_mov_b32 v{OA+i}, 0")
        e(f"v_mov_b32 v{OB+i}, 0")
    e("s_waitcnt lgkmcnt(0)")
    if QBAR:
        e(f"""
        s_cmp_lg_u32 s8, 0
        s_cbranch_scc1 L_kb_pr1
        s_setprio 3
        L_kb_pr1:
        s_cmp_lg_u32 s8, 1
        s_cbranch_scc1 L_kb_pr2
        s_setprio 2
        L_kb_pr2:
        s_cmp_lt_u32 s6, 12
        s_cbranch_scc1 L_kb_go2
        s_setprio 1
        s_waitcnt vmcnt(0)
        s_barrier
        v_mov_b32 v{PA}, {CNT}
        ds_write_b128 v{PA}, v[{OA}:{OA+3}]
        ds_write_b128 v{PA}, v[{OA}:{OA+3}] offset:16
        s_cmp_lg_u32 s6, 15
        s_cbranch_scc1 L_kb_nf2b
        s_lshl_b32 s11, s20, 7
        s_lshl_b32 s9, s21, 2
        s_add_u32 s11, s11, s9
        s_add_u32 s11, s11, {WS_F2B}
        v_mov_b32 v{PA+1}, s3
        v_mov_b32 v{PA+2}, 0
        s_mov_b64 exec, 1
        buffer_store_dword v{PA+1}, v{PA+2}, s[12:15], s11 offen sc1
        s_mov_b64 exec, -1
        L_kb_nf2b:
        s_waitcnt lgkmcnt(0)
        s_barrier
        L_kb_go2:
        """)
    for x in QK(SA, QA1, QA2, 0): e(x)
    e("s_nop 7\ns_nop 3")
    for i in range(NIT):
        def bar_if(q, tag):
            e(f"s_cmp_lg_u32 s8, {q}\ns_cbranch_scc1 L_kb_nb{tag}\ns_barrier\nL_kb_nb{tag}:")
        if QBAR:
            if i == 1:
                e("s_cmp_lg_u32 s8, 2\ns_cbranch_scc1 L_kb_nbe\ns_waitcnt vmcnt(0)\ns_barrier\ns_barrier\nL_kb_nbe:")
            if i == 2: bar_if(1, "a")
            if i == 3: bar_if(1, "b")
            if i == 3: bar_if(0, "c")
            if i == 5: bar_if(0, "d")
            if i == 12:
                e("s_cmp_lg_u32 s8, 3\ns_cbranch_scc1 L_kb_npr\ns_setprio 0\nL_kb_npr:")
        else:
            if i == 3:
                e("s_waitcnt vmcnt(0)\ns_barrier")
                e(f"v_mov_b32 v{PA}, {CNT}\nv_mov_b32 v{PA+4}, 0\nv_mov_b32 v{PA+5}, 0\nv_mov_b32 v{PA+6}, 0\nv_mov_b32 v{PA+7}, 0\nds_write_b128 v{PA}, v[{PA+4}:{PA+7}]\nds_write_b128 v{PA}, v[{PA+4}:{PA+7}] offset:16")
            if i == 4: e("s_barrier")
        if i == 5:
            e(f"""
            s_cmp_ge_u32 s6, 3
            s_cbranch_scc1 L_kb_notouch
            s_cmp_ge_u32 s2, 216
            s_cbranch_scc1 L_kb_notouch
            v_mul_u32_u24 v{PA}, 9216, v2
            v_mul_u32_u24 v{PA+1}, 1152, v2
            s_mul_i32 s9, s7, {64*9216}
            s_add_u32 s9, s9, s44
            s_mul_i32 s10, s7, {64*1152}
            s_add_u32 s10, s10, s48
            buffer_load_dword v0, v{PA}, s[16:19], s9 offen
            buffer_load_dword v0, v{PA+1}, s[56:59], s10 offen
            L_kb_notouch:
            """)
        ex1 = []
        if i + 1 < NIT:
            if (i + 1) % SEG == 0: ex1 += bumpK()
            ex1 += rdK(i + 1)
        mf = QK(SB, QB1, QB2, i) + (PV(OB, PB, i-1) if i > 0 else [])
        phase(mf, SA, PA, ex1)
        e("s_waitcnt lgkmcnt(0)")
        exv = []
        if i + 1 < NIT:
            if (i + 1) % SEG == 0: exv += bumpV()
            exv += rdV(i + 1)
        mf = (QK(SA, QA1, QA2, i+1) if i + 1 < NIT else [None, None]) + PV(OA, PA, i)
        phase(mf, SB, PB, exv)
    e("s_nop 1")
    for x in PV(OB, PB, NIT-1): e(x)
    k.tr(2)
    def pc(kk): return 1024 * kk
    e(f"""
    s_cmp_eq_u32 s8, 3
    s_cbranch_scc1 L_kb_b3
    s_setprio 3
    v_and_b32 v3, 15, v2
    v_lshrrev_b32 v4, 4, v2
    s_lshl_b32 s9, s8, 2
    s_add_u32 s9, s9, {CNT}
    v_mov_b32 v8, s9
    v_mov_b32 v9, 1
    s_mov_b64 exec, 1
    ds_add_u32 v8, v9
    s_mov_b64 exec, -1
    s_mov_b32 s11, {SPIN}
    L_kb_qspin:
    ds_read_b32 v10, v8
    s_waitcnt lgkmcnt(0)
    v_readfirstlane_b32 s9, v10
    s_cmp_ge_u32 s9, 4
    s_cbranch_scc1 L_kb_qok
    s_sleep 2
    s_sub_u32 s11, s11, 1
    s_cmp_lg_u32 s11, 0
    s_cbranch_scc1 L_kb_qspin
    L_kb_qok:
    s_cmp_ge_u32 s8, 2
    s_cbranch_scc1 L_kb_deposit
    s_cmp_ge_u32 s2, 216
    s_cbranch_scc1 L_kb_deposit
    v_lshrrev_b32 v84, 1, v2
    v_and_b32 v85, 1, v2
    v_lshlrev_b32 v85, 4, v85
    v_and_b32 v87, 1, v3
    v_mul_u32_u24 v87, 1152, v87
    v_lshl_add_u32 v87, v4, 4, v87
    s_lshl_b32 s45, s38, 6
    s_add_u32 s45, s45, {WS_CBT}
    v_lshlrev_b32 v89, 8, v4
    v_lshl_add_u32 v89, v3, 3, v89
    v_add_u32 v89, s47, v89
    s_mov_b32 s50, {32*9216}
    s_mov_b32 s51, 9216
    s_cmp_eq_u32 s8, 0
    s_cbranch_scc1 L_kb_sgo
    s_mov_b32 s16, s56
    s_mov_b32 s17, s57
    s_mov_b32 s44, s48
    s_mov_b32 s46, s49
    s_mov_b32 s50, {32*1152}
    s_mov_b32 s51, 1152
    L_kb_sgo:
    v_mul_lo_u32 v86, s51, v84
    v_add_u32 v86, v86, v85
    """)
    for c in range(6):
        e(f"s_add_u32 s11, s47, {1024*c}")
        e("s_mov_b32 m0, s11")
        e("s_nop 0")
        e("buffer_load_dwordx4 v86, s[16:19], s44 offen lds")
        e("s_add_u32 s44, s44, s50")
    for c in range(6):
        e(f"buffer_load_dwordx4 v[{56+4*c}:{59+4*c}], v87, s[12:15], s45 offen offset:{64*c} sc1")
    e("s_waitcnt vmcnt(0)")
    for c in range(6):
        e(f"ds_read_b64_tr_b16 v[{8+4*c}:{9+4*c}], v89 offset:{1024*c}")
        e(f"ds_read_b64_tr_b16 v[{10+4*c}:{11+4*c}], v89 offset:{1024*c+128}")
    for c in range(6):
        bb = 8 + 4*c
        e(f"s_waitcnt lgkmcnt({2*(5-c)})")
        if c == 4: e("s_add_u32 s46, s46, 4096")
        e(f"buffer_store_dwordx4 v[{bb}:{bb+3}], v1, s[12:15], s46 offen offset:{1024*(c%4)} sc1")
        cc = "0" if c == 0 else "v[80:83]"
        e(f"v_mfma_f32_16x16x32_bf16 v[80:83], v[{bb}:{bb+3}], v[{56+4*c}:{59+4*c}], {cc}")
    e(f"""
    s_cmp_eq_u32 s8, 1
    s_cbranch_scc1 L_kb_deposit
    v_lshlrev_b32 v86, 7, v4
    v_lshl_add_u32 v86, v3, 2, v86
    s_lshl_b32 s46, s36, 9
    s_lshl_b32 s9, s37, 3
    s_add_u32 s46, s46, s9
    s_add_u32 s46, s46, {WS_UT}
    v_cmp_gt_u32 vcc, 2, v3
    s_and_saveexec_b64 s[34:35], vcc
    s_nop 3
    buffer_store_dword v80, v86, s[12:15], s46 offen sc1
    buffer_store_dword v81, v86, s[12:15], s46 offen offset:32 sc1
    buffer_store_dword v82, v86, s[12:15], s46 offen offset:64 sc1
    buffer_store_dword v83, v86, s[12:15], s46 offen offset:96 sc1
    s_mov_b64 exec, s[34:35]
    L_kb_deposit:
    v_add_u32 v{AK1}, s47, v1
    ds_write_b128 v{AK1}, v[{OA}:{OA+3}]
    ds_write_b128 v{AK1}, v[{OA+4}:{OA+7}] offset:{pc(1)}
    ds_write_b128 v{AK1}, v[{OB}:{OB+3}] offset:{pc(2)}
    ds_write_b128 v{AK1}, v[{OB+4}:{OB+7}] offset:{pc(3)}
    ds_write_b128 v{AK1}, v[{OA+8}:{OA+11}] offset:{pc(4)}
    ds_write_b128 v{AK1}, v[{OB+8}:{OB+11}] offset:{pc(5)}
    s_waitcnt lgkmcnt(0)
    """)
    e(f"""
    s_cmp_ge_u32 s8, 2
    s_cbranch_scc1 L_kb_nofs
    """)
    e("""
    s_waitcnt vmcnt(0)
    """)
    k.tr(22)
    e(f"""
    s_lshl_b32 s9, s8, 2
    s_add_u32 s9, s9, {CNT+16}
    v_mov_b32 v120, s9
    v_mov_b32 v121, 1
    s_mov_b64 exec, 1
    ds_add_rtn_u32 v122, v120, v121
    s_waitcnt lgkmcnt(0)
    s_mov_b64 exec, -1
    v_readfirstlane_b32 s9, v122
    s_lshl_b32 s10, s20, 7
    s_lshl_b32 s11, s21, 2
    s_add_u32 s10, s10, s11
    s_mul_i32 s11, s8, {WS_FS2 - WS_FS}
    s_add_u32 s10, s10, s11
    s_add_u32 s10, s10, {WS_FS}
    s_cmp_lg_u32 s9, 3
    s_cbranch_scc1 L_kb_nofs
    """)
    setflag(k, 10)
    e(f"""
    L_kb_nofs:
    s_cmp_ge_u32 s6, 3
    s_cbranch_scc1 L_kb_noax
    s_mul_i32 s9, s23, 27
    v_add_u32 v5, s9, v2
    v_lshrrev_b32 v6, 2, v5
    v_and_b32 v5, 3, v5
    v_lshlrev_b32 v5, 2, v5
    v_lshl_add_u32 v6, v6, 7, v5
    v_lshlrev_b32 v5, 7, v2
    s_mov_b32 s10, {WS_FS}
    """)
    poll(k, "fs", "buffer_load_dword v120, v6, s[12:15], s10 offen sc1", 1, "s_mov_b64 exec, 0x7ffffff", sleep=4)
    k.tr(8)
    e(f"""
    s_mov_b32 s9, s6
    v_lshlrev_b32 v6, 5, v2
    s_mul_i32 s10, s23, 18432
    s_mul_i32 s11, s9, 6144
    s_add_u32 s10, s10, s11
    s_add_u32 s10, s10, {WS_UT}
    s_mov_b32 s40, 0xffff
    """)
    for r in range(3):
        e(f"buffer_load_dwordx4 v[{16+8*r}:{19+8*r}], v6, s[12:15], s10 offen sc1")
        e(f"buffer_load_dwordx2 v[{20+8*r}:{21+8*r}], v6, s[12:15], s10 offen offset:16 sc1")
        if r < 2: e("s_add_u32 s10, s10, 2048")
    for r in range(3):
        b = 16 + 8*r; o = 96 + 8*r
        e(f"s_waitcnt vmcnt({2*(2-r)})")
        e(f"""
        v_add_f32 v40, v{b}, v{b+2}
        v_add_f32 v41, v{b+1}, v{b+3}
        v_add_f32 v40, v40, v{b+4}
        v_add_f32 v41, v41, v{b+5}
        """)
        split3(e, 40, o, 43, 44, 42)
        split3(e, 41, o+3, 45, 46, 42)
        e(f"""
        v_bfi_b32 v{o+1}, s40, v43, v{o}
        v_bfi_b32 v{o+2}, s40, v43, v44
        v_bfi_b32 v{o+4}, s40, v45, v{o+3}
        v_bfi_b32 v{o+5}, s40, v45, v46
        v_mov_b32 v{o+6}, 0
        v_mov_b32 v{o+7}, 0
        """)
    e(f"""
    s_cmp_lg_u32 s2, 0
    s_cbranch_scc1 L_kb_noax
    s_cmp_lg_u32 s6, 2
    s_cbranch_scc1 L_kb_noax
    """)
    e(f"""
    s_add_u32 s9, s33, 1
    v_mov_b32 v120, s9
    v_mov_b32 v121, 0
    s_mov_b32 s9, {WS_EPB}
    s_mov_b64 exec, 1
    buffer_store_dword v120, v121, s[12:15], s9 offen sc1
    s_mov_b64 exec, -1
    L_kb_noax:
    """)
    A = 8
    XR = 80
    e(f"""
    s_cmp_ge_u32 s6, 8
    s_cbranch_scc1 L_kb_b3
    v_lshlrev_b32 v5, 7, v2
    s_mov_b32 s10, {WS_F2B}
    """)
    poll(k, "f2b", "buffer_load_dwordx4 v[120:123], v5, s[12:15], s10 offen sc1", 4, sleep=4)
    e(f"""
    L_kb_pref:
    s_mul_i32 s36, s21, 9
    s_add_u32 s36, s36, s6
    s_mul_i32 s10, s36, 18432
    s_add_u32 s10, s10, {WS_WO}
    """)
    for s in range(18):
        if s and s % 4 == 0: e("s_add_u32 s10, s10, 4096")
        e(f"buffer_load_dwordx4 v[{A+4*s}:{A+4*s+3}], v1, s[12:15], s10 offen offset:{1024*(s%4)} sc1")
    k.srd(16, 28, 0, ACT_BYTES)
    e(f"""
    v_mul_u32_u24 v7, 1152, v3
    v_lshl_add_u32 v7, v4, 3, v7
    v_lshlrev_b32 v6, 4, v4
    s_mul_i32 s37, s20, 36864
    s_lshl_b32 s9, s36, 5
    s_add_u32 s37, s37, s9
    s_add_u32 s38, s37, 18432
    s_lshl_b32 s9, s36, 6
    s_add_u32 s10, s9, 4608
    s_add_u32 s9, s9, 9216
    buffer_load_dwordx2 v[{XR}:{XR+1}], v7, s[16:19], s37 offen
    buffer_load_dwordx2 v[{XR+2}:{XR+3}], v7, s[16:19], s38 offen
    buffer_load_dwordx4 v[{XR+4}:{XR+7}], v6, s[12:15], s10 offen sc1
    buffer_load_dwordx4 v[{XR+8}:{XR+11}], v6, s[12:15], s9 offen sc1
    s_cmp_eq_u32 s6, 8
    s_cbranch_scc1 L_kb_b4
    s_mov_b32 s50, {WS_W1F}
    v_lshlrev_b32 v5, 7, v2
    s_cmp_lt_u32 s6, 3
    s_cbranch_scc1 L_kb_tch
    s_cmp_lt_u32 s6, 4
    s_cbranch_scc1 L_kb_b3
    s_cmp_ge_u32 s6, {7 if FS2E else 0}
    s_cbranch_scc1 L_kb_b3
    s_mov_b32 s50, {WS_W2F}
    s_mul_i32 s9, s23, 27
    v_add_u32 v5, s9, v2
    v_lshrrev_b32 v6, 2, v5
    v_and_b32 v5, 3, v5
    v_lshlrev_b32 v5, 2, v5
    v_lshl_add_u32 v6, v6, 7, v5
    v_lshlrev_b32 v5, 7, v2
    s_mov_b32 s10, {WS_FS2}
    """)
    poll(k, "fs2", "buffer_load_dword v120, v6, s[12:15], s10 offen sc1", 1, "s_mov_b64 exec, 0x7ffffff", sleep=4, tries=FS2E or 1)
    e(f"""
    s_cmp_eq_u32 s11, 0
    s_cbranch_scc1 L_kb_b3
    L_kb_tch:
    s_mul_i32 s10, s23, 663552
    s_mul_i32 s11, s55, 41472
    s_add_u32 s10, s10, s11
    s_mul_i32 s11, s7, 13824
    s_add_u32 s10, s10, s11
    s_add_u32 s10, s10, s50
    buffer_load_dword v126, v5, s[12:15], s10 offen
    s_add_u32 s10, s10, 6912
    buffer_load_dword v127, v5, s[12:15], s10 offen
    L_kb_b3:
    s_setprio 0
    """)
    k.tr(4)
    e(f"""
    s_waitcnt lgkmcnt(0)
    s_barrier
    """)
    k.tr(5)
    k.trc(11)
    e(f"""
    s_cmp_eq_u32 s6, 8
    s_cbranch_scc1 L_kb_pref
    s_cmp_lg_u32 s8, 3
    s_cbranch_scc1 L_kb_b4
    """)
    for src in range(3):
        e(f"s_mul_i32 s11, s7, 9472")
        e(f"s_add_u32 s11, s11, {src*QREG}")
        e(f"v_add_u32 v{AK1}, s11, v1")
        for t in range(2):
            for c in range(3):
                r = 8 + 24*src + 12*t + 4*c
                e(f"ds_read_b128 v[{r}:{r+3}], v{AK1} offset:{pc(2*t + c if c < 2 else 4 + t)}")
    e(f"""
    s_mul_i32 s9, s7, 36
    v_lshlrev_b32 v{AK2}, 2, v4
    v_add_u32 v{AK2}, s9, v{AK2}
    v_lshlrev_b32 v{AV}, 4, v3
    s_mul_i32 s9, s21, 9216
    s_add_u32 s9, s9, {OFB}
    v_add_u32 v{AV}, s9, v{AV}
    """)
    for src in range(3):
        e(f"s_waitcnt lgkmcnt({6*(2-src)})")
        for t, O in enumerate((OA, OB)):
            for i in range(11): e(f"v_add_f32 v{O+i}, v{O+i}, v{8 + 24*src + 12*t + i}")
    e(f"""
    v_mov_b32 v8, v{OA+10}
    v_mov_b32 v9, v{OB+10}
    s_nop 1
    v_permlane32_swap_b32 v{OA+10}, v8
    v_permlane32_swap_b32 v{OB+10}, v9
    s_nop 1
    v_rcp_f32 v8, v{OA+10}
    v_rcp_f32 v9, v{OB+10}
    s_nop 0
    """)
    for t, O in enumerate((OA, OB)):
        for i in range(10): e(f"v_mul_f32 v{O+i}, v{O+i}, v{8+t}")
        for i in range(5): e(f"v_cvt_pk_bf16_f32 v{PA+6*t+i}, v{O+2*i}, v{O+2*i+1}")
    for t in range(2):
        for i, dl in enumerate((0, 2, 8, 10, 16)):
            a = 12 + 5*t + i
            e(f"v_add_u32 v10, {18*t + dl}, v{AK2}")
            e(f"v_lshrrev_b32 v11, 3, v10")
            e(f"v_and_b32 v10, 7, v10")
            e(f"v_lshl_add_u32 v11, v11, 9, v{AV}")
            e(f"v_lshl_add_u32 v{a}, v10, 1, v11")
            if i < 4: e(f"ds_write_b32 v{a}, v{PA+6*t+i}")
    e(f"""
    s_mov_b32 exec_hi, 0
    ds_write_b32 v16, v{PA+4}
    ds_write_b32 v21, v{PA+10}
    s_mov_b64 exec, -1
    v_and_b32 v3, 15, v2
    v_lshrrev_b32 v4, 4, v2
    s_waitcnt lgkmcnt(0)
    L_kb_b4:
    s_barrier
    """)
    k.tr(6)
    e(f"""
    s_cmp_lt_u32 s6, 9
    s_cbranch_scc1 L_kb_nost9
    s_sub_u32 s9, s6, 9
    s_lshl_b32 s9, s9, 10
    s_mul_i32 s11, s21, 9216
    s_add_u32 s9, s9, s11
    s_add_u32 s10, s9, {OFB}
    v_add_u32 v5, s10, v1
    ds_read_b128 v[8:11], v5
    ds_read_b128 v[12:15], v5 offset:7168
    s_mul_i32 s10, s20, 36864
    s_add_u32 s10, s10, s9
    s_add_u32 s10, s10, {WS_O}
    s_add_u32 s11, s10, 7168
    s_waitcnt lgkmcnt(0)
    buffer_store_dwordx4 v[8:11], v1, s[12:15], s10 offen sc1
    s_cmp_ge_u32 s6, 11
    s_cbranch_scc1 L_kb_nost9
    buffer_store_dwordx4 v[12:15], v1, s[12:15], s11 offen sc1
    L_kb_nost9:
    s_cmp_ge_u32 s6, 3
    s_cbranch_scc1 L_kb_noaxw
    v_lshlrev_b32 v5, 9, v4
    v_lshl_add_u32 v5, v3, 4, v5
    s_mul_i32 s11, s6, 6144
    s_add_u32 s11, s11, {AXL}
    v_add_u32 v5, s11, v5
    ds_write_b128 v5, v[96:99]
    ds_write_b128 v5, v[100:103] offset:256
    ds_write_b128 v5, v[104:107] offset:2048
    ds_write_b128 v5, v[108:111] offset:2304
    ds_write_b128 v5, v[112:115] offset:4096
    ds_write_b128 v5, v[116:119] offset:4352
    v_mov_b32 v5, {AXL + 18432}
    v_mov_b32 v92, 0
    v_mov_b32 v93, 0
    v_mov_b32 v94, 0
    v_mov_b32 v95, 0
    ds_write_b128 v5, v[92:95]
    ds_write_b128 v5, v[92:95] offset:512
    ds_write_b128 v5, v[92:95] offset:1024
    L_kb_noaxw:
    """)
    e(f"""
    s_add_u32 s9, s21, 1
    s_mul_i32 s9, s9, 9216
    s_lshl_b32 s10, s6, 10
    s_add_u32 s10, s10, s9
    s_add_u32 s50, s6, 16
    s_min_u32 s50, s50, 26
    s_lshl_b32 s50, s50, 10
    s_add_u32 s50, s50, s9
    s_sub_u32 s9, s10, 36864
    s_cmp_ge_u32 s10, 36864
    s_cselect_b32 s10, s9, s10
    s_sub_u32 s9, s50, 36864
    s_cmp_ge_u32 s50, 36864
    s_cselect_b32 s50, s9, s50
    s_mul_i32 s9, s20, 36864
    s_add_u32 s9, s9, {WS_O}
    s_add_u32 s51, s10, s9
    s_add_u32 s52, s50, s9
    s_add_u32 s10, s10, {OFB}
    s_add_u32 s50, s50, {OFB}
    v_add_u32 v5, s10, v1
    v_add_u32 v0, s50, v1
    s_mov_b32 s11, {SPIN}
    """)
    if PROBE: e(f"""
    s_mov_b64 exec, 1
    L_kb_oprobe:
    buffer_load_dword v120, v1, s[12:15], s51 offen offset:1020 sc1
    buffer_load_dword v121, v1, s[12:15], s52 offen offset:1020 sc1
    s_waitcnt vmcnt(0)
    v_max_u32 v6, v120, v121
    v_cmp_eq_u32 vcc, -1, v6
    s_cbranch_vccz L_kb_oprk
    s_sub_u32 s11, s11, 1
    s_cmp_lg_u32 s11, 0
    s_cbranch_scc1 L_kb_oprobe
    L_kb_oprk:
    s_mov_b64 exec, -1
    s_mov_b32 s11, {SPIN}
    """)
    e(f"""
    L_kb_opoll:
    buffer_load_dwordx4 v[120:123], v1, s[12:15], s51 offen sc1
    buffer_load_dwordx4 v[124:127], v1, s[12:15], s52 offen sc1
    s_waitcnt vmcnt(0)
    v_max_u32 v6, v120, v121
    v_max3_u32 v6, v6, v122, v123
    v_max3_u32 v6, v6, v124, v125
    v_max3_u32 v6, v6, v126, v127
    v_cmp_eq_u32 vcc, -1, v6
    s_cbranch_vccz L_kb_ook
    s_sub_u32 s11, s11, 1
    s_cmp_lg_u32 s11, 0
    s_cbranch_scc1 L_kb_opoll
    L_kb_ook:
    ds_write_b128 v5, v[120:123]
    ds_write_b128 v0, v[124:127]
    s_waitcnt lgkmcnt(0)
    """)
    k.tr(9)
    e("s_barrier")
    k.tr(10)
    ACC = 4; AF = 52; BF = 112; RD = 5
    vm = VM(k)
    e(f"""
    s_mul_i32 s40, s23, 36
    s_mul_i32 s43, s6, 3
    s_add_u32 s40, s40, s43
    s_mul_i32 s40, s40, 18432
    s_add_u32 s44, s40, {WS_W2F}
    s_add_u32 s40, s40, {WS_W1F}
    s_add_u32 s41, s40, 18432
    s_add_u32 s42, s40, 36864
    s_add_u32 s45, s44, 18432
    s_add_u32 s46, s44, 36864
    s_mul_i32 s48, s23, 36
    s_add_u32 s48, s48, s43
    s_lshl_b32 s48, s48, 10
    s_add_u32 s48, s48, {WS_AX}
    """)
    seq = [(1, s_, i) for s_ in range(19) for i in range(3)] + [(2, s_, i) for i in range(3) for s_ in range(18)]
    NS = 15
    def slot(fr): return AF + 4 * (seq.index(fr) % NS)
    def ldF(n, track=True):
        if n >= len(seq): return
        ph, s_, i = seq[n]
        r = AF + 4 * (n % NS)
        if ph == 1 and s_ == 18:
            if i == 0: e("s_waitcnt lgkmcnt(0)")
            e(f"ds_read_b128 v[{r}:{r+3}], v3 offset:{512*i}")
            return
        so = (40 if ph == 1 else 44) + i
        if s_ and s_ % 4 == 0: e(f"s_add_u32 s{so}, s{so}, 4096")
        t = f"buffer_load_dwordx4 v[{r}:{r+3}], v1, s[12:15], s{so} offen offset:{1024*(s_%4)} sc1"
        if track: vm.issue(t, f"F{n}")
        else: e(t)
    def ldA(ph, s_, track=True):
        for i in range(3): ldF(3*s_ + i, track)
    e("""
    s_cmp_lt_u32 s6, 9
    s_cbranch_scc1 L_kb_op
    s_cmp_ge_u32 s6, 12
    s_cbranch_scc1 L_kb_h1
    """)
    for s in range(RD): ldA(1, s, track=False)
    e("s_branch L_kb_b8")
    e("L_kb_h1:")
    e("s_branch L_kb_b8")
    e("L_kb_op:")
    e(f"""
    v_lshlrev_b32 v5, 9, v4
    v_lshl_add_u32 v5, v3, 4, v5
    v_add_u32 v5, {OFB}, v5
    """)
    OB_ = 92
    def rd(s):
        b = OB_ + 8*(s % 3)
        e(f"ds_read_b128 v[{b}:{b+3}], v5 offset:{2048*s}")
        e(f"ds_read_b128 v[{b+4}:{b+7}], v5 offset:{2048*s+256}")
    rd(0); rd(1)
    e("s_waitcnt vmcnt(0)")
    for s in range(18):
        if s + 2 < 18: rd(s + 2)
        e(f"s_waitcnt lgkmcnt({2 * (min(18, s + 3) - (s + 1))})")
        b = OB_ + 8*(s % 3)
        c0 = "0" if s == 0 else "v[116:119]"; c1 = "0" if s == 0 else "v[120:123]"
        e(f"v_mfma_f32_16x16x32_bf16 v[116:119], v[{A+4*s}:{A+4*s+3}], v[{b}:{b+3}], {c0}")
        e(f"v_mfma_f32_16x16x32_bf16 v[120:123], v[{A+4*s}:{A+4*s+3}], v[{b+4}:{b+7}], {c1}")
    for i in range(12): e(f"v_mov_b32 v{8+i}, v{XR+i}")
    for s in range(3): ldA(1, s)
    X, GA, CB1 = 8, 12, 16
    C = 116; P_ = 24; U = 32
    for i in range(4): e(f"v_cvt_pk_bf16_f32 v{P_+i}, v{C+2*i}, v{C+2*i+1}")
    for i in range(4):
        e(f"v_lshlrev_b32 v{C+2*i}, 16, v{P_+i}")
        e(f"v_and_b32 v{C+2*i+1}, 0xffff0000, v{P_+i}")
    for i in range(8): e(f"v_mul_f32 v{C+i}, v{C+i}, v{GA+i%4}")
    for i in range(4): e(f"v_cvt_pk_bf16_f32 v{P_+i}, v{C+2*i}, v{C+2*i+1}")
    for i in range(4):
        e(f"v_lshlrev_b32 v{C+2*i}, 16, v{P_+i}")
        e(f"v_and_b32 v{C+2*i+1}, 0xffff0000, v{P_+i}")
        e(f"v_lshlrev_b32 v{U+2*i}, 16, v{X+i}")
        e(f"v_and_b32 v{U+2*i+1}, 0xffff0000, v{X+i}")
    for i in range(8): e(f"v_add_f32 v{C+i}, v{C+i}, v{U+i}")
    for i in range(4): e(f"v_cvt_pk_bf16_f32 v{P_+i}, v{C+2*i}, v{C+2*i+1}")
    e(f"""
    s_lshl_b32 s9, s6, 10
    s_add_u32 s10, s9, {XS}
    v_add_u32 v5, s10, v1
    ds_write_b128 v5, v[{P_}:{P_+3}]
    """)
    for i in range(4):
        e(f"v_lshlrev_b32 v{C+2*i}, 16, v{P_+i}")
        e(f"v_and_b32 v{C+2*i+1}, 0xffff0000, v{P_+i}")
    for i in range(8): e(f"v_mul_f32 v{U+i}, v{C+i}, v{CB1+i%4}")
    for i in range(4): e(f"v_cvt_pk_bf16_f32 v{28+i}, v{U+2*i}, v{U+2*i+1}")
    e(f"""
    s_mul_i32 s10, s20, 36864
    s_mul_i32 s11, s21, 9216
    s_add_u32 s10, s10, s11
    s_add_u32 s10, s10, s9
    s_add_u32 s10, s10, {WS_YF}
    v_permlane16_swap_b32 v28, v30
    v_permlane16_swap_b32 v29, v31
    s_nop 1
    """)
    vm.issue("buffer_store_dwordx4 v[28:31], v1, s[12:15], s10 offen sc1", "yst")
    e(f"""
    v_add_f32 v40, v{C}, v{C+1}
    v_add_f32 v41, v{C+4}, v{C+5}
    v_add_f32 v42, v{C+2}, v{C+3}
    v_add_f32 v43, v{C+6}, v{C+7}
    v_add_f32 v40, v40, v42
    v_add_f32 v41, v41, v43
    """)
    xg_sum(e, [40, 41], [42, 43])
    e("v_mul_f32 v40, 0x3d800000, v40\nv_mul_f32 v41, 0x3d800000, v41")
    for i in range(8): e(f"v_sub_f32 v{C+i}, v{C+i}, v{40 + i//4}")
    e(f"v_mul_f32 v44, v{C}, v{C}\nv_mul_f32 v46, v{C+4}, v{C+4}")
    for i in range(1, 4):
        e(f"v_fmac_f32 v44, v{C+i}, v{C+i}")
        e(f"v_fmac_f32 v46, v{C+4+i}, v{C+4+i}")
    xg_sum(e, [44, 46], [42, 43])
    e(f"""
    v_mov_b32 v45, v44
    v_mov_b32 v44, v40
    v_mov_b32 v47, v46
    v_mov_b32 v46, v41
    s_lshl_b32 s9, s6, 8
    s_add_u32 s9, s9, {STX}
    v_lshlrev_b32 v42, 3, v3
    v_add_u32 v42, s9, v42
    ds_write_b64 v42, v[44:45]
    ds_write_b64 v42, v[46:47] offset:128
    s_waitcnt lgkmcnt(0)
    L_kb_b8:
    s_barrier
    """)
    k.tr(12)
    e(f"""
    s_cmp_lt_u32 s6, 12
    s_cbranch_scc1 L_kb_ffn
    s_cmp_lg_u32 s6, 15
    s_cbranch_scc1 L_kb_nost
    """)
    e(f"v_and_b32 v26, 31, v2\nv_lshlrev_b32 v26, 3, v26\nv_add_u32 v27, {STX}, v26")
    for w in range(9): e(f"ds_read_b64 v[{32+2*w}:{33+2*w}], v27 offset:{256*w}")
    e("s_waitcnt lgkmcnt(0)")
    e("v_add_f32 v28, v32, v34")
    for w in range(2, 9): e(f"v_add_f32 v28, v28, v{32+2*w}")
    e(f"v_mul_f32 v28, {hex(f32bits(1.0/9))}, v28")
    e("v_add_f32 v29, v33, v35")
    for w in range(2, 9): e(f"v_add_f32 v29, v29, v{33+2*w}")
    e("v_mov_b32 v30, 0")
    for w in range(9):
        e(f"v_sub_f32 v31, v{32+2*w}, v28")
        e(f"v_fmac_f32 v30, v31, v31")
    e(f"""
    v_fmac_f32 v29, 0x41800000, v30
    v_lshlrev_b32 v26, 2, v26
    s_lshl_b32 s9, s20, 10
    s_lshl_b32 s37, s21, 3
    s_add_u32 s9, s9, s37
    s_add_u32 s9, s9, {WS_STATS}
    s_mov_b32 exec_hi, 0
    buffer_store_dwordx2 v[28:29], v26, s[12:15], s9 offen sc1
    s_mov_b64 exec, -1
    L_kb_nost:
    s_lshr_b32 s36, s7, 1
    s_and_b32 s37, s7, 1
    s_mul_i32 s37, s37, 3072
    s_mul_i32 s9, s36, {YTB}
    s_add_u32 s9, s9, s37
    v_add_u32 v5, s9, v1
    s_lshl_b32 s10, s22, 1
    s_add_u32 s10, s10, s36
    s_mul_i32 s10, s10, 36864
    s_add_u32 s10, s10, s37
    s_add_u32 s10, s10, {WS_YF}
    """)
    def yld(r):
        e(f"s_add_u32 s9, s10, {6144*r}")
        for j in range(3):
            R = 8 + 12*r + 4*j
            e(f"buffer_load_dwordx4 v[{R}:{R+3}], v1, s[12:15], s9 offen offset:{1024*j} sc1")
    def chk(regs): chkp(e, regs, 6)
    for r in range(6):
        e(f"s_mov_b32 s11, {SPIN}")
        if r > 0:
            e(f"s_waitcnt vmcnt({3*(5-r) + 2})")
            e(f"s_branch L_kb_yc{r}")
        e(f"L_kb_yp{r}:")
        yld(r)
        e("s_waitcnt vmcnt(0)")
        e(f"L_kb_yc{r}:")
        chk(range(8 + 12*r, 20 + 12*r))
        e(f"""
        s_cbranch_vccz L_kb_yk{r}
        s_sub_u32 s11, s11, 1
        s_cmp_lg_u32 s11, 0
        s_cbranch_scc1 L_kb_yp{r}
        L_kb_yk{r}:
        """)
        if r == 0:
            k.tr(15)
            for rr in range(1, 6): yld(rr)
            e(f"""
            s_lshl_b32 s38, s22, 11
            s_add_u32 s38, s38, {WS_STATS}
            v_lshlrev_b32 v7, 5, v2
            buffer_load_dwordx4 v[80:83], v7, s[12:15], s38 offen sc1
            buffer_load_dwordx4 v[84:87], v7, s[12:15], s38 offen offset:16 sc1
            """)
        for j in range(3):
            R = 8 + 12*r + 4*j
            e(f"ds_write_b128 v5, v[{R}:{R+3}] offset:{6144*r + 1024*j}")
        if r < 2: e("s_waitcnt lgkmcnt(0)\ns_barrier")

    e(f"""
    s_cmp_lg_u32 s6, 12
    s_cbranch_scc1 L_kb_hexit
    s_mov_b32 s11, {SPIN}
    s_waitcnt vmcnt(0)
    s_branch L_kb_sc
    L_kb_sp:
    buffer_load_dwordx4 v[80:83], v7, s[12:15], s38 offen sc1
    buffer_load_dwordx4 v[84:87], v7, s[12:15], s38 offen offset:16 sc1
    s_waitcnt vmcnt(0)
    L_kb_sc:
    """)
    chk(range(80, 88))
    b = 80
    e(f"""
    s_cbranch_vccz L_kb_sk
    s_sub_u32 s11, s11, 1
    s_cmp_lg_u32 s11, 0
    s_cbranch_scc1 L_kb_sp
    L_kb_sk:
    s_waitcnt lgkmcnt(0)
    v_add_f32 v20, v{b}, v{b+2}
    v_add_f32 v21, v{b+4}, v{b+6}
    v_add_f32 v20, v20, v21
    v_mul_f32 v20, 0.25, v20
    v_add_f32 v21, v{b+1}, v{b+3}
    v_add_f32 v22, v{b+5}, v{b+7}
    v_add_f32 v21, v21, v22
    v_sub_f32 v{b}, v{b}, v20
    v_sub_f32 v{b+2}, v{b+2}, v20
    v_sub_f32 v{b+4}, v{b+4}, v20
    v_sub_f32 v{b+6}, v{b+6}, v20
    v_mul_f32 v22, v{b}, v{b}
    v_fmac_f32 v22, v{b+2}, v{b+2}
    v_fmac_f32 v22, v{b+4}, v{b+4}
    v_fmac_f32 v22, v{b+6}, v{b+6}
    v_fmac_f32 v21, 0x43100000, v22
    v_mov_b32 v22, {hex(f32bits(1e-5))}
    v_fmac_f32 v22, {hex(f32bits(1.0/576))}, v21
    v_rsq_f32 v21, v22
    v_sqrt_f32 v22, v22
    v_sub_f32 v20, 0, v20
    v_lshlrev_b32 v5, 2, v2
    v_add_u32 v5, {RSB}, v5
    ds_write_b32 v5, v21
    s_mov_b32 s40, 0xffff
    """)
    m1, m2, m3, s1, s2, s3_ = 8, 9, 10, 11, 12, 13
    split3(e, 20, m1, m2, m3, 23)
    split3(e, 22, s1, s2, s3_, 23)
    def pair(d, lo, hi): e(f"v_bfi_b32 v{d}, s40, v{lo}, v{hi}")
    pair(28, m1, m2); pair(29, m1, m3); pair(30, m2, m1); pair(31, s1, s2); pair(32, s1, s3_); pair(33, s2, s1)
    e(f"""
    v_mov_b32 v34, 0
    v_mov_b32 v35, 0
    v_mov_b32 v36, 0
    v_mov_b32 v37, 0
    v_lshrrev_b32 v5, 5, v2
    v_mul_u32_u24 v5, {YTB}, v5
    v_and_b32 v6, 31, v2
    v_lshl_add_u32 v5, v6, 4, v5
    ds_write_b128 v5, v[28:31] offset:{72*512}
    ds_write_b128 v5, v[32:35] offset:{73*512}
    ds_write_b128 v5, v[34:37] offset:{74*512}
    ds_write_b128 v5, v[34:37] offset:{75*512}
    L_kb_hexit:
    v_mov_b32 v5, {CNT}
    v_mov_b32 v6, 0
    ds_write_b32 v5, v6
    ds_write_b32 v5, v6 offset:4
    s_waitcnt lgkmcnt(0)
    s_branch L_kb_hwait
    """)
    e("L_kb_ffn:")
    e("s_cmp_lt_u32 s6, 9\ns_cbranch_scc1 L_kb_ring\ns_waitcnt vmcnt(0)\nL_kb_ring:")
    def lane_ids(m, g):
        e(f"""
        v_lshrrev_b32 v{m}, 4, v1
        v_lshrrev_b32 v{g}, 4, v{m}
        v_and_b32 v{m}, 15, v{m}
        """)
    e(f"""
    v_lshlrev_b32 v0, 9, v4
    v_lshl_add_u32 v0, v3, 4, v0
    v_add_u32 v2, {YTB}, v0
    v_lshlrev_b32 v5, 8, v4
    v_lshl_add_u32 v5, v3, 4, v5
    s_mul_i32 s9, s43, 512
    s_add_u32 s9, s9, {AXL}
    v_add_u32 v5, s9, v5
    v_cmp_gt_u32 vcc, 2, v4
    v_mov_b32 v3, {AXL + 18432}
    s_nop 0
    v_cndmask_b32 v3, v3, v5, vcc
    """)
    def rdB1(ph, s, nt):
        if ph == 1: areg, o = (0 if nt < 2 else 2), s*2048 + (nt % 2)*256
        else: areg, o = (0 if s < 9 else 2), (s % 9)*4096 + nt*256
        e(f"ds_read_b128 v[{BF+4*nt}:{BF+4*nt+3}], v{areg} offset:{o}")
    nbar = [0]
    def bar():
        e("s_barrier"); nbar[0] += 1
    def step(ph, s, last, tiles):
        frs = [(ph, s, i) for i in tiles]
        wa = "" if (ph == 1 and s == 18) else vm.wait_str(f"F{seq.index(frs[-1])}") + " "
        for nt in range(4):
            n = 3 if not last else (3 - nt)
            e(f"s_waitcnt {wa if nt == 0 else ''}lgkmcnt({n})")
            for fr in frs:
                a = slot(fr)
                c = ACC + 16*fr[2] + 4*nt
                cc = "0" if s == 0 else f"v[{c}:{c+3}]"
                e(f"v_mfma_f32_16x16x32_bf16 v[{c}:{c+3}], v[{a}:{a+3}], v[{BF+4*nt}:{BF+4*nt+3}], {cc}")
            if not last: rdB1(ph, s+1, nt)
        for fr in frs: ldF(seq.index(fr) + NS)
    e("s_barrier")
    k.tr(16)
    k.trc(13)
    for nt in range(4): rdB1(1, 0, nt)
    e("s_cmp_ge_u32 s6, 9\ns_cbranch_scc1 L_kb_ring2")
    for s in range(3, RD): ldA(1, s)
    e("L_kb_ring2:")
    for s in range(19):
        if (s + 1) % 3 == 0 and s + 1 < 19:
            bar()
            if FINE: k.tr(1 + (s+1)//3)
        step(1, s, s == 18, (0, 1, 2))
    if FINE: k.tr(15)
    lane_ids(BF, BF+1)
    e(f"""
    v_lshrrev_b32 v3, 1, v{BF+1}
    v_lshlrev_b32 v3, 10, v3
    v_lshl_add_u32 v3, v{BF}, 4, v3
    v_and_b32 v{BF+2}, 1, v{BF+1}
    v_lshl_add_u32 v3, v{BF+2}, 3, v3
    s_lshl_b32 s9, s43, 11
    s_add_u32 s9, s9, {HB}
    v_add_u32 v3, s9, v3
    v_lshlrev_b32 v0, 10, v{BF+1}
    v_lshl_add_u32 v0, v{BF}, 4, v0
    v_add_u32 v0, {HB}, v0
    v_add_u32 v2, 36864, v0
    """)
    e(f"v_lshlrev_b32 v{BF+3}, 2, v{BF}\nv_add_u32 v{BF+3}, {RSB}, v{BF+3}")
    for nt in range(4): e(f"ds_read_b32 v{BF+4+2*nt}, v{BF+3} offset:{64*nt}")
    e("s_waitcnt lgkmcnt(0)")
    for nt in range(4):
        for i in range(3):
            c = ACC + 16*i + 4*nt
            e(f"v_pk_mul_f32 v[{c}:{c+1}], v[{c}:{c+1}], v[{BF+4+2*nt}:{BF+5+2*nt}] op_sel_hi:[1,0]")
            e(f"v_pk_mul_f32 v[{c+2}:{c+3}], v[{c+2}:{c+3}], v[{BF+4+2*nt}:{BF+5+2*nt}] op_sel_hi:[1,0]")
            e(f"v_cvt_pk_bf16_f32 v{c}, v{c}, v{c+1}")
            e(f"v_cvt_pk_bf16_f32 v{c+1}, v{c+2}, v{c+3}")
            e(f"v_pk_max_i16 v{c}, v{c}, 0")
            e(f"v_pk_max_i16 v{c+1}, v{c+1}, 0")
            e(f"ds_write_b64 v3, v[{c}:{c+1}] offset:{2048*i + 256*nt}")
    e(f"""
    s_mul_i32 s9, s6, 21846
    s_lshr_b32 s9, s9, 16
    s_mul_i32 s10, s9, 3
    s_sub_u32 s10, s6, s10
    s_mul_i32 s10, s10, 3072
    s_lshl_b32 s11, s22, 3
    s_add_u32 s9, s9, s11
    s_lshl_b32 s9, s9, 3
    s_add_u32 s9, s9, s23
    s_mul_i32 s9, s9, 9216
    s_add_u32 s9, s9, s10
    s_add_u32 s50, s9, {WS_PART}
    s_add_u32 s51, s50, {32*9216}
    s_lshl_b32 s56, s22, 7
    s_lshl_b32 s11, s23, 2
    s_add_u32 s56, s56, s11
    """)
    e("s_waitcnt lgkmcnt(0)")
    bar()
    k.tr(17)
    k.trc(14)
    AC2 = ACC + 32
    BS = [BF, ACC, ACC + 16]
    def rdS(g):
        s = g % 18; bb = BS[g % 3]
        for nt in range(4):
            areg, o = (0 if s < 9 else 2), (s % 9)*4096 + nt*256
            e(f"ds_read_b128 v[{bb+4*nt}:{bb+4*nt+3}], v{areg} offset:{o}")
    e("s_setprio 2")
    rdS(0); rdS(1)
    for g in range(54):
        p, s = divmod(g, 18)
        fr = (2, s, p)
        if s == PB_SYNC and p > 0:
            t0_ = BS[(g + 2) % 3]
            lab = k.label("nf")
            e(f"""
            s_waitcnt {vm.wait_str(f'pst{p-1}')} lgkmcnt(0)
            v_mov_b32 v3, {CNT + 4*(p-1)}
            v_mov_b32 v{t0_}, 1
            s_mov_b64 exec, 1
            ds_add_rtn_u32 v{t0_+1}, v3, v{t0_}
            s_waitcnt lgkmcnt(0)
            s_mov_b64 exec, -1
            v_readfirstlane_b32 s9, v{t0_+1}
            s_add_u32 s10, s56, {WS_F4 if p == 1 else WS_F5}
            v_mov_b32 v{t0_}, s3
            v_mov_b32 v3, 0
            s_cmp_lg_u32 s9, 11
            s_cbranch_scc1 {lab}
            s_mov_b64 exec, 1
            buffer_store_dword v{t0_}, v3, s[12:15], s10 offen sc1
            s_mov_b64 exec, -1
            s_nop 1
            {lab}:
            """)
            if FINE: k.tr(8 + p)
        if g + 2 < 54: rdS(g + 2)
        e(f"s_waitcnt {vm.wait_str(f'F{seq.index(fr)}')} lgkmcnt({4 * (min(54, g + 3) - (g + 1))})")
        a_ = slot(fr); bb = BS[g % 3]
        for nt in range(4):
            c = AC2 + 4*nt
            cc = "0" if s == 0 else f"v[{c}:{c+3}]"
            e(f"v_mfma_f32_16x16x32_bf16 v[{c}:{c+3}], v[{a_}:{a_+3}], v[{bb+4*nt}:{bb+4*nt+3}], {cc}")
        ldF(seq.index(fr) + NS)
        if s == 17:
            if p == 2: k.tr(18)
            e("s_nop 7")
            for np_ in range(2):
                c = AC2 + 8*np_
                for q in range(4): e(f"v_cvt_pk_bf16_f32 v{c+q}, v{c+2*q}, v{c+2*q+1}")
                vm.issue(f"buffer_store_dwordx4 v[{c}:{c+3}], v1, s[12:15], s{50+np_} offen offset:{1024*p} sc1", f"pst{p}")
            if p < 2: e(f"s_setprio {1-p}\ns_nop 1")
    k.tr(19)
    e(f"""
    s_cmp_ge_u32 s6, 3
    s_cbranch_scc1 L_kb_end
    s_mul_i32 s52, s6, 3
    s_add_u32 s52, s52, 2
    s_mov_b32 s53, 9
    s_mov_b32 s54, {WS_F4}
    s_branch L_kb_red
    L_kb_hwait:
    s_barrier
    s_cmp_eq_u32 s6, 12
    s_cbranch_scc1 L_kb_hn2
    s_mul_i32 s9, s23, 27
    v_add_u32 v5, s9, v2
    v_lshrrev_b32 v6, 2, v5
    v_and_b32 v5, 3, v5
    v_lshlrev_b32 v5, 2, v5
    v_lshl_add_u32 v6, v6, 7, v5
    v_lshlrev_b32 v5, 7, v2
    s_mov_b32 s10, {WS_FS2}
    """)
    poll(k, "fs2m", "buffer_load_dword v120, v6, s[12:15], s10 offen sc1", 1, "s_mov_b64 exec, 0x7ffffff", sleep=4)
    e(f"""
    s_mul_i32 s10, s23, 663552
    s_mul_i32 s11, s55, 41472
    s_add_u32 s10, s10, s11
    s_sub_u32 s11, s7, 1
    s_mul_i32 s11, s11, 13824
    s_add_u32 s10, s10, s11
    s_add_u32 s10, s10, {WS_W2F}
    buffer_load_dword v92, v5, s[12:15], s10 offen
    s_add_u32 s10, s10, 6912
    buffer_load_dword v93, v5, s[12:15], s10 offen
    L_kb_hn2:
    s_barrier
    v_mov_b32 v8, -1
    v_mov_b32 v9, -1
    v_mov_b32 v10, -1
    v_mov_b32 v11, -1
    s_lshl_b32 s9, s22, 3
    s_lshl_b32 s10, s7, 1
    s_add_u32 s9, s9, s10
    s_lshl_b32 s9, s9, 3
    s_add_u32 s9, s9, s23
    s_mul_i32 s9, s9, 9216
    s_add_u32 s9, s9, {WS_PART + 2048}
    """)
    for j in range(2):
        for c in range(3):
            e("buffer_store_dwordx4 v[8:11], v1, s[12:15], s9 offen sc1")
            e(f"s_add_u32 s9, s9, {3072 if c < 2 else 8*9216 - 6144}")
    for _ in range(nbar[0] - 1 - 2 - 1): e("s_barrier")
    e(f"""
    s_waitcnt vmcnt(0)
    s_barrier
    s_cmp_eq_u32 s6, 15
    s_cbranch_scc1 L_kb_end
    s_mul_i32 s52, s7, 3
    s_add_u32 s53, s52, 1
    s_mov_b32 s54, {WS_F4}
    s_sleep {HSLEEP}
    L_kb_red:
    v_lshrrev_b32 v2, 4, v1
    v_and_b32 v3, 15, v2
    v_lshrrev_b32 v4, 4, v2
    s_lshr_b32 s10, s2, 3
    s_lshl_b32 s10, s10, 7
    s_add_u32 s10, s10, s54
    v_lshlrev_b32 v5, 2, v2
    """)
    poll(k, "f5", "buffer_load_dword v120, v5, s[12:15], s10 offen sc1", 1, "s_mov_b64 exec, 255", sleep=3)
    k.tr(21)
    k.srd(16, 30, 0, ACT_BYTES)
    e(f"""
    L_kb_red2:
    s_mul_i32 s36, s21, 9
    s_add_u32 s36, s36, s52
    s_lshl_b32 s9, s52, 10
    s_mul_i32 s10, s2, {8*9216}
    s_add_u32 s10, s10, s9
    s_add_u32 s39, s10, {WS_PART}
    s_cmp_ge_u32 s6, 3
    s_cbranch_scc1 L_kb_rld
    v_mul_u32_u24 v5, 9216, v2
    s_mov_b32 s11, {SPIN}
    s_mov_b64 exec, 255
    L_kb_rpr:
    buffer_load_dword v8, v5, s[12:15], s39 offen offset:1020 sc1
    s_waitcnt vmcnt(0)
    v_cmp_eq_u32 vcc, -1, v8
    s_cbranch_vccz L_kb_rpk
    s_sub_u32 s11, s11, 1
    s_cmp_lg_u32 s11, 0
    s_cbranch_scc1 L_kb_rpr
    L_kb_rpk:
    s_mov_b64 exec, -1
    s_mov_b32 s11, {SPIN}
    L_kb_rld:
    s_mov_b32 s10, s39
    """)
    for sl in range(8):
        e(f"buffer_load_dwordx4 v[{8+4*sl}:{11+4*sl}], v1, s[12:15], s10 offen sc1")
        if sl < 7: e("s_add_u32 s10, s10, 9216")
    e("s_cmp_ge_u32 s6, 3\ns_cbranch_scc1 L_kb_rok\ns_waitcnt vmcnt(0)")
    chkp(e, range(8, 40), 6)
    e(f"""
    s_cbranch_vccz L_kb_rok
    s_sub_u32 s11, s11, 1
    s_cmp_lg_u32 s11, 0
    s_cbranch_scc1 L_kb_rld
    L_kb_rok:
    s_add_u32 s38, s9, {XS}
    v_add_u32 v5, s38, v1
    ds_read_b128 v[40:43], v5
    s_lshl_b32 s9, s36, 6
    s_add_u32 s9, s9, 11520
    v_lshlrev_b32 v6, 4, v4
    buffer_load_dwordx4 v[44:47], v6, s[12:15], s9 offen sc1
    v_mul_u32_u24 v7, 1152, v3
    v_lshl_add_u32 v7, v4, 3, v7
    s_mul_i32 s37, s20, 36864
    s_lshl_b32 s9, s36, 5
    s_add_u32 s37, s37, s9
    s_add_u32 s38, s37, 18432
    """)
    for sl in range(8):
        e(f"s_waitcnt vmcnt({8-sl})")
        for d in range(4):
            w = 8 + 4*sl + d
            if sl == 0:
                e(f"v_lshlrev_b32 v{48+2*d}, 16, v{w}")
                e(f"v_and_b32 v{49+2*d}, 0xffff0000, v{w}")
            else:
                e(f"v_lshlrev_b32 v56, 16, v{w}")
                e(f"v_and_b32 v57, 0xffff0000, v{w}")
                e(f"v_add_f32 v{48+2*d}, v{48+2*d}, v56")
                e(f"v_add_f32 v{49+2*d}, v{49+2*d}, v57")
    e("s_waitcnt vmcnt(0) lgkmcnt(0)")
    for i in range(4): e(f"v_cvt_pk_bf16_f32 v{8+i}, v{48+2*i}, v{49+2*i}")
    for i in range(4):
        e(f"v_lshlrev_b32 v{48+2*i}, 16, v{8+i}")
        e(f"v_and_b32 v{49+2*i}, 0xffff0000, v{8+i}")
    for i in range(8): e(f"v_mul_f32 v{48+i}, v{48+i}, v{44+i%4}")
    for i in range(4): e(f"v_cvt_pk_bf16_f32 v{8+i}, v{48+2*i}, v{49+2*i}")
    for i in range(4):
        e(f"v_lshlrev_b32 v{48+2*i}, 16, v{8+i}")
        e(f"v_and_b32 v{49+2*i}, 0xffff0000, v{8+i}")
        e(f"v_lshlrev_b32 v{16+2*i}, 16, v{40+i}")
        e(f"v_and_b32 v{17+2*i}, 0xffff0000, v{40+i}")
    for i in range(8): e(f"v_add_f32 v{48+i}, v{48+i}, v{16+i}")
    for i in range(4): e(f"v_cvt_pk_bf16_f32 v{60+i}, v{48+2*i}, v{49+2*i}")
    e("""
    buffer_store_dwordx2 v[60:61], v7, s[16:19], s37 offen
    buffer_store_dwordx2 v[62:63], v7, s[16:19], s38 offen
    s_mov_b32 s52, s53
    s_mov_b32 s53, 9
    s_mov_b32 s54, WSF5
    s_cmp_lt_u32 s52, 9
    s_cbranch_scc1 L_kb_red
    """.replace("WSF5", str(WS_F5)))
    e("L_kb_end:\ns_endpgm")
    e(f"""
    L_kb_fallback:
    v_mov_b32 v{QA2+1}, 0
    v_mov_b32 v{QB2+1}, 0
    v_mov_b32 v{PA}, 0xff7fffff
    v_mov_b32 v{PA+1}, 0xff7fffff
    v_lshlrev_b32 v{PA+2}, 2, v3
    v_mov_b32 v{PB+5}, 0
    s_mov_b32 s9, {WS_KV}
    L_kb_fb_loop:
    buffer_load_dwordx4 v[{PB}:{PB+3}], v1, s[12:15], s9 offen sc1
    buffer_load_dword v{PB+4}, v{PA+2}, s[12:15], s9 offen offset:1024 sc1
    s_waitcnt vmcnt(0)
    """)
    for (S, q1, q2) in ((SA, QA1, QA2), (SB, QB1, QB2)):
        e(f"v_mfma_f32_32x32x8_bf16 v[{S}:{S+15}], v[{PB+4}:{PB+5}], v[{q2}:{q2+1}], 0")
        e(f"v_mfma_f32_32x32x16_bf16 v[{S}:{S+15}], v[{PB}:{PB+3}], v[{q1}:{q1+3}], v[{S}:{S+15}]")
    e("s_nop 15")
    for i in range(0, 16, 2): e(f"v_max3_f32 v{PA}, v{PA}, v{SA+i}, v{SA+i+1}")
    for i in range(0, 16, 2): e(f"v_max3_f32 v{PA+1}, v{PA+1}, v{SB+i}, v{SB+i+1}")
    e(f"""
    s_add_u32 s9, s9, {KVBLK}
    s_cmp_lt_u32 s9, {WS_KV + 64*KVBLK}
    s_cbranch_scc1 L_kb_fb_loop
    v_mov_b32 v{PA+2}, v{PA}
    v_mov_b32 v{PA+3}, v{PA+1}
    s_nop 1
    v_permlane32_swap_b32 v{PA}, v{PA+2}
    v_permlane32_swap_b32 v{PA+1}, v{PA+3}
    s_nop 1
    v_max_f32 v{PA}, v{PA}, v{PA+2}
    v_max_f32 v{PA+1}, v{PA+1}, v{PA+3}
    s_branch L_kb_shift
    L_kb_codeend:
    s_endpgm
    """)
```

```python
from asmlib import *
from layout import *
from back import xg_sum, SPIN
import math

HFR = 0
T3B = HFR + 36864
MP = T3B + 2304
LS = MP + 1024
MF = LS + 2304
LF = MF + 64
SLAB = 43008
KVS = 0
QST = SLAB + 5 * 9216 + 64
QP = 296
KST = SLAB + 13 * 9216
KSO = MP

def emit_front(k):
    e = k.e
    A = 8
    def traddr():
        e(f"""
        v_lshrrev_b32 v6, 2, v3
        v_lshl_add_u32 v6, v4, 3, v6
        v_mul_u32_u24 v6, 288, v6
        v_and_b32 v7, 3, v3
        v_lshl_add_u32 v6, v7, 3, v6
        s_lshl_b32 s9, s6, 5
        s_add_u32 s9, s9, {SLAB}
        v_add_u32 v6, s9, v6
        v_add_u32 v7, {7*9216}, v6
        """)
    def trs(s_):
        sl_ = s_ % 13
        ar, o = (6, sl_*9216) if sl_ < 7 else (7, (sl_-7)*9216)
        e(f"ds_read_b64_tr_b16 v[{A+4*s_}:{A+4*s_+1}], v{ar} offset:{o}")
        e(f"ds_read_b64_tr_b16 v[{A+4*s_+2}:{A+4*s_+3}], v{ar} offset:{o+1152}")
    e(f"""
    s_cmp_ge_u32 s2, 256
    s_cbranch_scc1 L_kb_end
    s_load_dwordx2 s[4:5], s[0:1], 96
    s_load_dwordx8 s[24:31], s[0:1], 0
    s_load_dwordx2 s[32:33], s[0:1], 32
    s_load_dwordx4 s[36:39], s[0:1], 64
    s_load_dwordx2 s[40:41], s[0:1], 88
    v_lshrrev_b32 v1, 6, v0
    v_and_b32 v2, 63, v0
    v_readfirstlane_b32 s6, v1
    v_and_b32 v3, 15, v2
    v_lshrrev_b32 v4, 4, v2
    v_lshlrev_b32 v1, 4, v2
    s_and_b32 s21, s2, 3
    s_lshr_b32 s20, s2, 2
    s_waitcnt lgkmcnt(0)
    s_load_dword s34, s[4:5], {WS_EPB}
    """)
    k.srd(12, 4, 0, WS_SIZE)
    e("""
    s_cmp_ge_u32 s6, 13
    s_cbranch_scc1 L_ka_misc
    s_cmp_ge_u32 s6, 4
    s_cbranch_scc1 L_ka_prep
    """)
    e("""
    s_lshr_b32 s9, s2, 3
    s_and_b32 s10, s2, 7
    s_lshr_b32 s42, s9, 2
    s_lshl_b32 s42, s42, 5
    s_lshl_b32 s10, s10, 2
    s_add_u32 s42, s42, s10
    s_and_b32 s9, s9, 3
    s_add_u32 s42, s42, s9
    s_cmp_ge_u32 s42, 216
    s_cbranch_scc1 L_ka_b1
    s_lshl_b32 s43, s42, 5
    v_lshrrev_b32 v5, 1, v0
    v_and_b32 v6, 1, v0
    v_lshlrev_b32 v6, 4, v6
    v_mul_u32_u24 v80, 6912, v5
    v_add_u32 v80, v80, v6
    v_lshlrev_b32 v7, 1, v5
    """)
    for i in range(1, 5): e(f"v_add_u32 v{80+i}, {884736*i}, v80")
    k.srd(16, 36, 0, 1152)
    k.srd(44, 38, 0, 576*6912)
    for i in range(5): e(f"buffer_load_dwordx4 v[{16+4*i}:{19+4*i}], v{80+i}, s[44:47], s43 offen")
    for i in range(5): e(f"buffer_load_ushort v{10+i}, v7, s[16:19], 0 offen offset:{256*i}")
    for i in range(8): e(f"v_mov_b32 v{40+i}, 0")
    e(f"s_mov_b32 s9, {hex(f32bits(-1.4426950408889634))}")
    e("s_waitcnt vmcnt(0)")
    for i in range(5): e(f"v_lshlrev_b32 v{10+i}, 16, v{10+i}")
    for i in range(5): e(f"v_mul_f32 v{50+i}, s9, v{10+i}")
    for i in range(5): e(f"v_exp_f32 v{50+i}, v{50+i}")
    e("s_nop 0")
    for i in range(5): e(f"v_add_f32 v{50+i}, 1.0, v{50+i}")
    for i in range(5): e(f"v_rcp_f32 v{50+i}, v{50+i}")
    e("s_nop 0")
    for i in range(5): e(f"v_mul_f32 v{50+i}, v{50+i}, v{10+i}")
    for i in range(5): e(f"v_cvt_pk_bf16_f32 v{50+i}, v{50+i}, v{50+i}")
    for i in range(5): e(f"v_lshlrev_b32 v{50+i}, 16, v{50+i}")
    for i in range(5):
        for d in range(4):
            w = 16 + 4*i + d
            e(f"v_lshlrev_b32 v56, 16, v{w}")
            e(f"v_and_b32 v57, 0xffff0000, v{w}")
            e(f"v_fmac_f32 v{40+2*d}, v{50+i}, v56")
            e(f"v_fmac_f32 v{41+2*d}, v{50+i}, v57")
    e("s_nop 1")
    for rot in (2, 4, 8):
        for i in range(8):
            e(f"v_add_f32_dpp v{40+i}, v{40+i}, v{40+i} row_ror:{rot} row_mask:0xf bank_mask:0xf")
    e(f"""
    v_lshrrev_b32 v5, 4, v0
    v_lshlrev_b32 v5, 6, v5
    v_lshl_add_u32 v5, v6, 1, v5
    v_add_u32 v5, {MP}, v5
    v_cmp_gt_u32 vcc, 2, v3
    s_and_saveexec_b64 s[48:49], vcc
    ds_write_b128 v5, v[40:43]
    ds_write_b128 v5, v[44:47] offset:16
    s_mov_b64 exec, s[48:49]
    s_waitcnt lgkmcnt(0)
    s_mul_i32 s3, s34, 0x9E3779B1
    s_add_u32 s3, s3, 0x7F4A7C15
    s_lshl_b32 s9, s6, 2
    s_add_u32 s9, s9, {MF}
    v_mov_b32 v5, s9
    v_mov_b32 v6, s3
    ds_write_b32 v5, v6
    s_cmp_lg_u32 s6, 0
    s_cbranch_scc1 L_ka_b1
    s_mov_b32 s11, {SPIN}
    L_ka_ms:
    ds_read_b128 v[16:19], v5
    s_waitcnt lgkmcnt(0)
    v_xor_b32 v17, s3, v17
    v_xor_b32 v18, s3, v18
    v_xor_b32 v19, s3, v19
    v_or3_b32 v17, v17, v18, v19
    v_cmp_ne_u32 vcc, 0, v17
    s_cbranch_vccz L_ka_msk
    s_sub_u32 s11, s11, 1
    s_cmp_lg_u32 s11, 0
    s_cbranch_scc1 L_ka_ms
    L_ka_msk:
    """)
    e(f"v_lshlrev_b32 v5, 2, v3\nv_add_u32 v6, {MP}, v5")
    for i in range(16): e(f"ds_read_b32 v{16+i}, v6 offset:{64*i}")
    e("s_waitcnt lgkmcnt(0)")
    for st in (8, 4, 2, 1):
        for i in range(st): e(f"v_add_f32 v{16+i}, v{16+i}, v{16+i+st}")
    e(f"""
    s_mul_i32 s9, s42, 1821
    s_lshr_b32 s9, s9, 16
    s_mul_i32 s10, s9, 36
    s_sub_u32 s10, s42, s10
    s_lshl_b32 s10, s10, 4
    v_cvt_pk_bf16_f32 v16, v16, v16
    v_lshlrev_b32 v16, 16, v16
    s_cmp_eq_u32 s9, 1
    s_cbranch_scc1 L_ka_plus1
    s_cmp_eq_u32 s9, 4
    s_cbranch_scc0 L_ka_noplus1
    L_ka_plus1:
    v_add_f32 v16, 1.0, v16
    v_cvt_pk_bf16_f32 v16, v16, v16
    v_lshlrev_b32 v16, 16, v16
    L_ka_noplus1:
    s_mov_b64 exec, 0xffff
    s_cmp_ge_u32 s9, 2
    s_cbranch_scc1 L_ka_plain
    v_mov_b32 v17, s3
    v_lshlrev_b32 v6, 3, v3
    s_lshl_b32 s11, s42, 7
    s_add_u32 s11, s11, {WS_MODG}
    buffer_store_dwordx2 v[16:17], v6, s[12:15], s11 offen sc1
    s_branch L_ka_moddone
    L_ka_plain:
    s_lshl_b32 s11, s42, 6
    buffer_store_dword v16, v5, s[12:15], s11 offen sc1
    s_cmp_eq_u32 s9, 4
    s_cselect_b32 s11, 0, 1152
    s_cbranch_scc1 L_ka_cbt
    s_cmp_eq_u32 s9, 3
    s_cbranch_scc0 L_ka_moddone
    L_ka_cbt:
    s_lshl_b32 s10, s10, 1
    s_add_u32 s11, s11, s10
    s_add_u32 s11, s11, {WS_CBT}
    v_lshlrev_b32 v6, 1, v3
    buffer_store_short_d16_hi v16, v6, s[12:15], s11 offen sc1
    L_ka_moddone:
    s_mov_b64 exec, -1
    s_branch L_ka_b1
    """)
    X = 96
    e("L_ka_prep:")
    k.srd(16, 24, 0, ACT_BYTES)
    e(f"""
    s_sub_u32 s7, s6, 4
    v_mul_u32_u24 v6, 1152, v3
    v_lshl_add_u32 v6, v4, 4, v6
    s_mul_i32 s10, s20, 36864
    s_lshl_b32 s11, s7, 7
    s_add_u32 s10, s10, s11
    s_add_u32 s11, s10, 18432
    """)
    for ds in range(2):
        for nt in range(2):
            r = X + 8*ds + 4*nt
            e(f"buffer_load_dwordx4 v[{r}:{r+3}], v6, s[16:19], s{10 if nt==0 else 11} offen offset:{64*ds}")
    e("s_waitcnt vmcnt(0)")
    XF = 40
    for nt in range(2):
        for ds in range(2):
            for d in range(4):
                w = X + 8*ds + 4*nt + d; o = XF + 16*nt + 8*ds + 2*d
                e(f"v_lshlrev_b32 v{o}, 16, v{w}")
                e(f"v_and_b32 v{o+1}, 0xffff0000, v{w}")
    for nt in range(2):
        e(f"v_pk_add_f32 v[{80+2*nt}:{81+2*nt}], v[{XF+16*nt}:{XF+16*nt+1}], v[{XF+16*nt+2}:{XF+16*nt+3}]")
        for i in range(4, 16, 2): e(f"v_pk_add_f32 v[{80+2*nt}:{81+2*nt}], v[{80+2*nt}:{81+2*nt}], v[{XF+16*nt+i}:{XF+16*nt+i+1}]")
    e("v_add_f32 v84, v80, v81\nv_add_f32 v88, v82, v83")
    xg_sum(e, [84, 88], [80, 81])
    e("v_mul_f32 v84, 0x3c800000, v84\nv_mul_f32 v88, 0x3c800000, v88\nv_mov_b32 v85, v84\nv_mov_b32 v89, v88")
    for nt in range(2):
        m = 84 + 4*nt
        for i in range(0, 16, 2):
            e(f"v_pk_add_f32 v[80:81], v[{XF+16*nt+i}:{XF+16*nt+i+1}], v[{m}:{m+1}] neg_lo:[0,1] neg_hi:[0,1]")
            if i == 0: e(f"v_pk_mul_f32 v[{m+2}:{m+3}], v[80:81], v[80:81]")
            else: e(f"v_pk_fma_f32 v[{m+2}:{m+3}], v[80:81], v[80:81], v[{m+2}:{m+3}]")
        e(f"v_add_f32 v{m+1}, v{m+2}, v{m+3}")
    xg_sum(e, [85, 89], [80, 81])
    e(f"""
    s_lshl_b32 s9, s7, 8
    s_add_u32 s9, s9, {LS}
    v_lshlrev_b32 v82, 3, v3
    v_add_u32 v82, s9, v82
    ds_write_b64 v82, v[84:85]
    ds_write_b64 v82, v[88:89] offset:128
    s_waitcnt lgkmcnt(0)
    s_mul_i32 s3, s34, 0x9E3779B1
    s_add_u32 s3, s3, 0x7F4A7C15
    """)
    k.trf(1)
    e("s_barrier")
    e(f"""
    v_lshlrev_b32 v5, 3, v2
    s_lshl_b32 s9, s7, 9
    s_add_u32 s9, s9, {WS_MODG}
    s_add_u32 s10, s9, 4608
    s_mov_b32 s11, {SPIN}
    L_ka_mp:
    buffer_load_dwordx2 v[112:113], v5, s[12:15], s9 offen sc1
    buffer_load_dwordx2 v[114:115], v5, s[12:15], s10 offen sc1
    s_waitcnt vmcnt(0)
    v_xor_b32 v113, s3, v113
    v_xor_b32 v115, s3, v115
    v_or_b32 v113, v113, v115
    v_cmp_ne_u32 vcc, 0, v113
    s_cbranch_vccz L_ka_mk
    s_sleep 4
    s_sub_u32 s11, s11, 1
    s_cmp_lg_u32 s11, 0
    s_cbranch_scc1 L_ka_mp
    L_ka_mk:
    """)
    k.trf(2)
    e("v_lshlrev_b32 v5, 5, v4")
    for ds in range(2):
        for j in range(8):
            e(f"ds_bpermute_b32 v{80+8*ds+j}, v5, v114 offset:{128*ds + 4*j}")
    for ds in range(2):
        e(f"s_waitcnt lgkmcnt({8*(1-ds)})")
        for nt in range(2):
            r = X + 8*ds + 4*nt
            for d in range(4):
                o = XF + 16*nt + 8*ds + 2*d
                e(f"v_pk_mul_f32 v[{o}:{o+1}], v[{o}:{o+1}], v[{80+8*ds+2*d}:{81+8*ds+2*d}]")
            for d in range(4):
                o = XF + 16*nt + 8*ds + 2*d
                e(f"v_cvt_pk_bf16_f32 v{r+d}, v{o}, v{o+1}")
    e(f"""
    s_lshl_b32 s9, s7, 12
    s_add_u32 s9, s9, {HFR}
    v_add_u32 v120, s9, v1
    s_lshl_b32 s9, s7, 8
    s_add_u32 s9, s9, {T3B}
    v_lshrrev_b32 v121, 5, v2
    v_lshlrev_b32 v121, 7, v121
    v_and_b32 v122, 31, v2
    v_lshl_add_u32 v121, v122, 1, v121
    v_add_u32 v121, s9, v121
    """)
    for ds in range(2):
        for nt in range(2):
            r = X + 8*ds + 4*nt
            e(f"ds_write_b128 v120, v[{r}:{r+3}] offset:{2048*ds + 1024*nt}")
    e("ds_write_b16_d16_hi v121, v114\nds_write_b16_d16_hi v121, v112 offset:64")
    e("s_branch L_ka_b2")
    e("""
    L_ka_misc:
    s_cmp_lg_u32 s6, 13
    s_cbranch_scc1 L_ka_dma
    """)
    e(f"""
    s_cmp_ge_u32 s21, 2
    s_cselect_b32 s16, s30, s28
    s_cselect_b32 s17, s31, s29
    s_mov_b32 s18, 20736
    s_mov_b32 s19, 0x20000
    s_and_b32 s9, s21, 1
    s_lshl_b32 s9, s9, 5
    v_lshrrev_b32 v6, 1, v2
    v_mul_u32_u24 v6, 36, v6
    v_and_b32 v7, 1, v2
    v_lshl_add_u32 v6, v7, 4, v6
    v_add_u32 v6, s9, v6
    v_lshlrev_b32 v7, 8, v4
    v_lshl_add_u32 v7, v3, 3, v7
    v_add_u32 v7, {KVS}, v7
    """)
    for c in range(18):
        e(f"s_mov_b32 m0, {KVS + 1024*c}")
        e("s_nop 0")
        e("buffer_load_dwordx4 v6, s[16:19], 0 offen lds")
        e("v_add_u32 v6, 1152, v6")
    e("s_waitcnt vmcnt(0)")
    for c in range(18):
        R = A + 4*c
        e(f"ds_read_b64_tr_b16 v[{R}:{R+1}], v7 offset:{1024*c}")
        e(f"ds_read_b64_tr_b16 v[{R+2}:{R+3}], v7 offset:{1024*c+128}")
    e("s_waitcnt lgkmcnt(0)\ns_barrier")
    e("s_mul_i32 s3, s34, 0x9E3779B1\ns_add_u32 s3, s3, 0x7F4A7C15\ns_setprio 3\ns_barrier\ns_branch L_ka_gemm13")
    e("L_ka_dma:")
    k.srd(44, 26, 0, 576*1152)
    e(f"""
    s_lshr_b32 s9, s2, 3
    s_mul_i32 s9, s9, 18
    v_mul_u32_u24 v5, 21846, v2
    v_lshrrev_b32 v5, 16, v5
    v_mul_u32_u24 v6, 3, v5
    v_sub_u32 v6, v2, v6
    v_add_u32 v5, s9, v5
    v_mul_u32_u24 v5, 1152, v5
    v_lshl_add_u32 v5, v6, 7, v5
    s_mul_i32 s10, s21, 288
    s_cmp_lg_u32 s6, 14
    s_cbranch_scc1 L_ka_nt
    buffer_load_dword v30, v5, s[44:47], s10 offen
    s_branch L_ka_nt2
    L_ka_nt:
    s_lshr_b32 s9, s2, 3
    """)
    k.code_touch("L_ka_b1", "L_kb_codeend", 9, 48, 5, 30, 2)
    e("L_ka_nt2:")
    for j in range(9):
        e(f"""
        v_add_u32 v5, {64*j}, v2
        v_mul_u32_u24 v7, 3641, v5
        v_lshrrev_b32 v7, 16, v7
        v_mul_u32_u24 v6, 18, v7
        v_sub_u32 v5, v5, v6
        v_mul_u32_u24 v7, 1152, v7
        v_lshl_add_u32 v{16+j}, v5, 4, v7
        """)
    e(f"""
    s_sub_u32 s9, s6, 14
    s_mul_i32 s11, s9, 9216
    s_add_u32 s11, s11, {SLAB}
    s_mul_i32 s9, s9, {32*1152}
    s_add_u32 s10, s10, s9
    """)
    def kdma():
        for j in range(9):
            e("s_mov_b32 m0, s11")
            e("s_add_u32 s11, s11, 1024")
            e(f"buffer_load_dwordx4 v{16+j}, s[44:47], s10 offen lds")
        e(f"s_add_u32 s10, s10, {64*1152}\ns_add_u32 s11, s11, 9216")
    for t in range(6):
        kdma()
        if t == 3: e("s_barrier")
    e("s_cmp_lg_u32 s6, 14\ns_cbranch_scc1 L_ka_d1")
    kdma()
    e(f"""
    L_ka_d1:
    s_sub_u32 s11, s11, {13*9216}
    s_waitcnt vmcnt(0) lgkmcnt(0)
    s_mul_i32 s3, s34, 0x9E3779B1
    s_add_u32 s3, s3, 0x7F4A7C15
    """)
    k.trf(10)
    e("s_barrier\ns_barrier")
    kdma(); kdma()
    e("s_cmp_lg_u32 s6, 15\ns_cbranch_scc1 L_ka_d2")
    kdma()
    e("""
    L_ka_d2:
    s_waitcnt vmcnt(0)
    s_barrier
    s_branch L_ka_bq
    """)
    e("L_ka_b1:")
    e("s_waitcnt lgkmcnt(0)")
    e("s_mul_i32 s3, s34, 0x9E3779B1\ns_add_u32 s3, s3, 0x7F4A7C15")
    e("s_barrier")
    e("s_cmp_lg_u32 s6, 1\ns_cbranch_scc1 L_ka_nost")
    e(f"v_and_b32 v5, 31, v2\nv_lshlrev_b32 v5, 3, v5\nv_add_u32 v80, {LS}, v5")
    for w in range(9): e(f"ds_read_b64 v[{84+2*w}:{85+2*w}], v80 offset:{256*w}")
    e("s_waitcnt lgkmcnt(0)")
    b_ = 84
    e(f"v_add_f32 v80, v{b_}, v{b_+2}")
    for w in range(2, 9): e(f"v_add_f32 v80, v80, v{b_+2*w}")
    e(f"v_mul_f32 v80, {hex(f32bits(1.0/9))}, v80")
    e(f"v_add_f32 v81, v{b_+1}, v{b_+3}")
    for w in range(2, 9): e(f"v_add_f32 v81, v81, v{b_+1+2*w}")
    e("v_mov_b32 v83, 0")
    for w in range(9):
        e(f"v_sub_f32 v82, v{b_+2*w}, v80")
        e(f"v_fmac_f32 v83, v82, v82")
    e(f"""
    v_fmac_f32 v81, 0x42800000, v83
    v_mov_b32 v82, {hex(f32bits(1e-5))}
    v_fmac_f32 v82, {hex(f32bits(1.0/576))}, v81
    v_rsq_f32 v82, v82
    s_nop 0
    v_mul_f32 v83, v80, v82
    v_sub_f32 v83, 0, v83
    v_add_u32 v5, {LF}, v5
    ds_write_b64 v5, v[82:83]
    L_ka_nost:
    s_waitcnt vmcnt(0)
    L_ka_b2:
    s_waitcnt lgkmcnt(0)
    """)
    k.trf(3)
    e("s_barrier")
    k.trf(4)
    e("""
    s_cmp_lt_u32 s6, 9
    s_cbranch_scc1 L_ka_g0
    """)
    e(f"""
    s_min_u32 s52, s2, 215
    s_mul_i32 s9, s52, 5462
    s_lshr_b32 s9, s9, 16
    s_mul_i32 s10, s9, 12
    s_sub_u32 s10, s52, s10
    s_mul_i32 s10, s10, 3
    v_mul_u32_u24 v5, 9216, v4
    v_lshl_add_u32 v5, v3, 1, v5
    s_mul_i32 s11, s9, {32*1152}
    s_lshl_b32 s42, s10, 5
    s_add_u32 s11, s11, s42
    s_add_u32 s42, s11, 4608
    s_mul_i32 s43, s10, 18
    s_add_u32 s43, s43, s9
    s_lshl_b32 s43, s43, 10
    s_add_u32 s43, s43, {WS_WO}
    """)
    k.srd(16, 32, 0, 576*1152)
    e("s_cmp_lg_u32 s6, 10\ns_cbranch_scc1 L_ka_now")
    for f in range(3):
        for j in range(8):
            e(f"buffer_load_ushort v{80+8*f+j}, v5, s[16:19], s{11 if j < 4 else 42} offen offset:{1152*(j%4) + 32*f}")
    e("L_ka_now:")
    e("s_barrier\ns_barrier")
    e(f"""
    s_cmp_lg_u32 s6, 9
    s_cbranch_scc1 L_ka_nop
    v_mov_b32 v80, -1
    v_mov_b32 v81, -1
    v_mov_b32 v82, -1
    v_mov_b32 v83, -1
    s_mul_i32 s10, s2, 9216
    s_add_u32 s11, s10, {WS_YF}
    s_add_u32 s10, s10, {WS_O}
    """)
    for c in range(9):
        if c and c % 4 == 0: e("s_add_u32 s10, s10, 4096\ns_add_u32 s11, s11, 4096")
        e(f"buffer_store_dwordx4 v[80:83], v1, s[12:15], s10 offen offset:{1024*(c%4)} sc1")
        e(f"buffer_store_dwordx4 v[80:83], v1, s[12:15], s11 offen offset:{1024*(c%4)} sc1")
    e(f"""
    s_lshl_b32 s10, s2, 8
    s_add_u32 s10, s10, {WS_STATS}
    s_mov_b64 exec, 0xffff
    buffer_store_dwordx4 v[80:83], v1, s[12:15], s10 offen sc1
    s_mov_b64 exec, -1
    s_waitcnt lgkmcnt(0)
    s_barrier
    s_branch L_ka_bq2
    L_ka_nop:
    """)
    e("s_cmp_lg_u32 s6, 10\ns_cbranch_scc1 L_ka_now2")
    e("s_waitcnt vmcnt(0)")
    for f in range(3):
        for x in range(4): e(f"v_lshl_or_b32 v{104+4*f+x}, v{80+8*f+2*x+1}, 16, v{80+8*f+2*x}")
        e(f"buffer_store_dwordx4 v[{104+4*f}:{107+4*f}], v1, s[12:15], s43 offen sc1")
        if f < 2: e("s_add_u32 s43, s43, 18432")
    e("L_ka_now2:")
    e("s_branch L_ka_bq")
    BR = 80
    def gemm(with_tr):
        e(f"""
        v_add_u32 v5, {HFR}, v1
        v_and_b32 v2, 1, v3
        v_lshlrev_b32 v2, 6, v2
        v_lshl_add_u32 v2, v4, 4, v2
        v_add_u32 v2, {T3B}, v2
        """)
        ops = []
        def rd(s):
            b = BR + 12*(s % 3)
            e(f"ds_read_b128 v[{b}:{b+3}], v5 offset:{2048*s}")
            e(f"ds_read_b128 v[{b+4}:{b+7}], v5 offset:{2048*s+1024}")
            e(f"ds_read_b128 v[{b+8}:{b+11}], v2 offset:{128*s}")
            ops.extend([f"B{s}"] * 3)
        if with_tr:
            traddr()
            trs(0); trs(1); ops.extend(["T"] * 4)
        for s in range(2): rd(s)
        for s in range(18):
            if with_tr and s == 8:
                e("s_waitcnt lgkmcnt(0)\ns_barrier")
            if with_tr and s == 12:
                e("s_barrier")
                for s_ in range(13, 18): trs(s_)
                ops.extend(["T"] * 10)
            if with_tr and s < 6:
                for s_ in (2 + 2*s, 3 + 2*s):
                    if s_ < 13: trs(s_); ops.extend(["T"] * 2)
            if s + 2 < 18: rd(s + 2)
            last = max(i for i, t in enumerate(ops) if t == f"B{s}")
            n = len(ops) - 1 - last
            if with_tr and s == 13: n = 3
            e(f"s_waitcnt lgkmcnt({min(n, 15)})")
            b = BR + 12*(s % 3)
            for t in range(3):
                c = 116 + 4*t
                cc = "0" if s == 0 else f"v[{c}:{c+3}]"
                e(f"v_mfma_f32_16x16x32_bf16 v[{c}:{c+3}], v[{A+4*s}:{A+4*s+3}], v[{b+4*t}:{b+4*t+3}], {cc}")
    e("L_ka_gemm13:")
    gemm(False)
    e("s_branch L_ka_gx")
    e("L_ka_g0:")
    gemm(True)
    e("L_ka_gx:")
    e(f"v_lshrrev_b32 v2, 4, v1\nv_lshlrev_b32 v7, 3, v3\nv_add_u32 v7, {LF}, v7")
    e("ds_read_b64 v[8:9], v7\nds_read_b64 v[10:11], v7 offset:128\ns_nop 7")
    for r in range(4):
        e(f"v_mov_b32_dpp v{12+r}, v{124+r} row_newbcast:0 row_mask:0xf bank_mask:0xf")
        e(f"v_mov_b32_dpp v{16+r}, v{124+r} row_newbcast:1 row_mask:0xf bank_mask:0xf")
    e("s_waitcnt lgkmcnt(0)")
    for nt in range(2):
        for r in range(4): e(f"v_fma_f32 v{20+r}, v{12+r}, v{9+2*nt}, v{16+r}")
        for r in range(4): e(f"v_fma_f32 v{116+4*nt+r}, v{116+4*nt+r}, v{8+2*nt}, v{20+r}")
    k.trf(5)
    cs = math.log2(math.e) / math.sqrt(DH)
    C = 116
    e(f"""
    s_cmp_eq_u32 s6, 13
    s_cbranch_scc1 L_ka_kv
    s_mov_b32 s9, {hex(f32bits(cs))}
    v_mul_u32_u24 v6, {QP}, v3
    v_lshl_add_u32 v6, v4, 3, v6
    s_lshl_b32 s11, s6, 5
    s_add_u32 s11, s11, {QST}
    v_add_u32 v6, s11, v6
    """)
    for i in range(8): e(f"v_mul_f32 v{C+i}, s9, v{C+i}")
    for i in range(4): e(f"v_cvt_pk_bf16_f32 v{8+i}, v{C+2*i}, v{C+2*i+1}")
    e(f"""
    ds_write_b64 v6, v[8:9]
    ds_write_b64 v6, v[10:11] offset:{16*QP}
    s_branch L_ka_bq
    L_ka_kv:
    s_mul_i32 s10, s20, {KVBLK}
    s_add_u32 s10, s10, {WS_KV}
    v_mov_b32 v24, 0
    """)
    for i in range(4): e(f"v_cvt_pk_bf16_f32 v{8+i}, v{C+2*i}, v{C+2*i+1}")
    e("""
    s_cmp_ge_u32 s21, 2
    s_cbranch_scc1 L_ka_v
    """)
    for i in range(4):
        e(f"v_lshlrev_b32 v{16+2*i}, 16, v{8+i}")
        e(f"v_and_b32 v{17+2*i}, 0xffff0000, v{8+i}")
    e(f"""
    s_cmp_eq_u32 s21, 1
    s_cbranch_scc1 L_ka_k2
    v_lshrrev_b32 v6, 1, v4
    v_lshlrev_b32 v6, 9, v6
    v_lshl_add_u32 v6, v3, 4, v6
    v_and_b32 v7, 1, v4
    v_lshl_add_u32 v6, v7, 3, v6
    ds_write_b64 v6, v[8:9] offset:{KSO}
    ds_write_b64 v6, v[10:11] offset:{KSO+256}
    s_waitcnt lgkmcnt(0)
    ds_read_b128 v[28:31], v1 offset:{KSO}
    s_waitcnt lgkmcnt(0)
    buffer_store_dwordx4 v[28:31], v1, s[12:15], s10 offen sc1
    v_mul_f32 v24, v16, v16
    v_mul_f32 v25, v20, v20
    v_fmac_f32 v24, v17, v17
    v_fmac_f32 v25, v21, v21
    v_fmac_f32 v24, v18, v18
    v_fmac_f32 v25, v22, v22
    v_fmac_f32 v24, v19, v19
    v_fmac_f32 v25, v23, v23
    """)
    xg_sum(e, [24, 25], [26, 27])
    e("""
    s_branch L_ka_norm
    L_ka_k2:
    v_lshlrev_b32 v6, 2, v3
    v_mul_f32 v24, v16, v16
    v_mul_f32 v25, v20, v20
    v_fmac_f32 v24, v17, v17
    v_fmac_f32 v25, v21, v21
    s_mov_b64 exec, 0xffff
    buffer_store_dword v8, v6, s[12:15], s10 offen offset:1024 sc1
    buffer_store_dword v10, v6, s[12:15], s10 offen offset:1088 sc1
    s_mov_b64 exec, -1
    L_ka_norm:
    v_max_f32 v24, v24, v25
    """)
    for rot in (1, 2, 4, 8):
        e("s_nop 1")
        e(f"v_max_f32_dpp v24, v24, v24 row_ror:{rot} row_mask:0xf bank_mask:0xf")
    e("""
    s_branch L_ka_pub
    L_ka_v:
    v_lshrrev_b32 v6, 2, v3
    v_and_b32 v6, 1, v6
    v_mul_u32_u24 v6, 304, v6
    v_lshrrev_b32 v7, 3, v3
    v_lshl_add_u32 v6, v7, 3, v6
    v_and_b32 v7, 3, v3
    v_lshl_add_u32 v6, v7, 1, v6
    v_lshl_add_u32 v6, v4, 6, v6
    s_add_u32 s10, s10, 1152
    s_cmp_eq_u32 s21, 3
    s_cbranch_scc1 L_ka_v2
    """)
    for nt in range(2):
        for r in range(4):
            op = "ds_write_b16" + ("_d16_hi" if r & 1 else "")
            e(f"{op} v6, v{8+2*nt+r//2} offset:{KSO + 608*nt + 16*r}")
    e(f"""
    v_mul_u32_u24 v7, 304, v4
    v_lshl_add_u32 v7, v3, 4, v7
    s_waitcnt lgkmcnt(0)
    ds_read_b128 v[28:31], v7 offset:{KSO}
    s_waitcnt lgkmcnt(0)
    buffer_store_dwordx4 v[28:31], v7, s[12:15], s10 offen sc1
    s_branch L_ka_pub
    L_ka_v2:
    v_mov_b32 v9, 0x3f80
    s_mov_b64 exec, 0xffff
    """)
    for nt in range(2):
        e(f"ds_write_b16 v6, v{8+2*nt} offset:{KSO + 608*nt + 256}")
        e(f"ds_write_b16_d16_hi v6, v{8+2*nt} offset:{KSO + 608*nt + 272}")
        e(f"ds_write_b16 v6, v9 offset:{KSO + 608*nt + 288}")
    e(f"""
    s_mov_b64 exec, -1
    v_mul_u32_u24 v7, 304, v4
    v_lshl_add_u32 v7, v3, 4, v7
    v_cmp_gt_u32 vcc, 3, v3
    s_waitcnt lgkmcnt(0)
    s_and_saveexec_b64 s[48:49], vcc
    ds_read_b128 v[28:31], v7 offset:{KSO+256}
    s_waitcnt lgkmcnt(0)
    buffer_store_dwordx4 v[28:31], v7, s[12:15], s10 offen offset:256 sc1
    """)
    e(f"""
    L_ka_pub:
    s_barrier
    s_mov_b64 exec, 1
    v_mov_b32 v25, v24
    v_mov_b32 v24, s3
    v_mov_b32 v6, 0
    s_lshl_b32 s11, s20, 7
    s_lshl_b32 s9, s21, 3
    s_add_u32 s11, s11, s9
    s_add_u32 s11, s11, {WS_F3}
    s_waitcnt vmcnt(0)
    buffer_store_dwordx2 v[24:25], v6, s[12:15], s11 offen sc1
    s_mov_b64 exec, -1
    s_setprio 0
    s_barrier
    s_barrier
    s_branch L_ka_bq2
    L_ka_bq:
    s_waitcnt vmcnt(0) lgkmcnt(0)
    """)
    k.trf(6)
    e("s_barrier")
    e("L_ka_bq2:")
    k.trf(7)
```
